```python
import torch

def _softmax(x, axis=-1):
    return torch.softmax(x, dim=axis)
def _gelu(x):
    return torch.nn.functional.gelu(x, approximate="tanh")
def _silu(x):
    return torch.nn.functional.silu(x)
def _sigmoid(x):
    return torch.sigmoid(x)
def _layernorm(x, axis=-1, eps=1e-5):
    m = x.mean(dim=axis, keepdim=True)
    v = x.var(dim=axis, keepdim=True, unbiased=False)
    return (x - m) / torch.sqrt(v + eps)
def _scatter_add(tgt, idx, src, axis=0):
    return tgt.clone().index_add_(axis, idx, src)
def _segment_sum(src, seg, n):
    out = torch.zeros((n,) + src.shape[1:], dtype=src.dtype)
    return out.index_add_(0, seg, src)
def _pad(x, pw):
    flat = tuple(v for pair in reversed(pw) for v in pair)
    return torch.nn.functional.pad(x, flat)

kernel_name = 'gated_mix__ssm_conv_h3__dense_activation_gelu__prompt'

def setup_inputs():

    _w = (lambda a: (lambda t: t.to(torch.bfloat16) if t.is_floating_point() else t)(torch.as_tensor(a)))
    def _A_setup():
        B, S, D = 1, 2048, 512
        ks = 4
        return {
            "q": _w((lambda *s: torch.randn(*s, dtype=torch.bfloat16) * 0.05)(B, S, D)),
            "k": _w((lambda *s: torch.randn(*s, dtype=torch.bfloat16) * 0.2)(B, S, D)),
            "v": _w((lambda *s: torch.randn(*s, dtype=torch.bfloat16) * 0.2)(B, S, D)),
            "shift_k": _w((lambda *s: torch.randn(*s, dtype=torch.bfloat16) * 0.2)(D, ks) * 0.5),
            "ssm_k": _w((lambda *s: torch.randn(*s, dtype=torch.bfloat16) * 0.8)(D, S) * (1.0 / S ** 0.5)),
            "ssm_D": _w((lambda *s: torch.randn(*s, dtype=torch.bfloat16) * 0.2)(D)),
        }
    _A_in = _A_setup()

    def _B_setup():
        B, S, D, F = 1, 2048, 512, 1376
        return {
            "x": _w((lambda *s: torch.randn(*s, dtype=torch.bfloat16) * 0.05)(B, S, D)),
            "w1": _w((lambda *s: torch.randn(*s, dtype=torch.bfloat16) * 3.2)(D, F) * (D ** -0.5)),
            "b1": _w((lambda *s: torch.randn(*s, dtype=torch.bfloat16) * 3.2)(F) * 0.01),
            "w2": _w((lambda *s: torch.randn(*s, dtype=torch.bfloat16) * 0.05)(F, D) * (F ** -0.5)),
            "b2": _w((lambda *s: torch.randn(*s, dtype=torch.bfloat16) * 0.1)(D) * 0.01),
        }
    _B_in = _B_setup()

    return {
        "A_q": _A_in["q"],
        "A_k": _A_in["k"],
        "A_v": _A_in["v"],
        "A_shift_k": _A_in["shift_k"],
        "A_ssm_k": _A_in["ssm_k"],
        "A_ssm_D": _A_in["ssm_D"],
        "B_x": _B_in["x"],
        "B_w1": _B_in["w1"],
        "B_b1": _B_in["b1"],
        "B_w2": _B_in["w2"],
        "B_b2": _B_in["b2"],
        "gate_w": _w((lambda *s: torch.randn(*s, dtype=torch.bfloat16) * 0.05)(512) * 16.0),
    }

def reference(A_q, A_k, A_v, A_shift_k, A_ssm_k, A_ssm_D, B_x, B_w1, B_b1, B_w2, B_b2, gate_w):
    def _A_ref(q, k, v, shift_k, ssm_k, ssm_D):
        B, S, D = q.shape
        ks = shift_k.shape[-1]
        k_pad = _pad(k, ((0, 0), (ks - 1, 0), (0, 0)))
        k_shift = torch.zeros_like(k)
        for t in range(ks):
            k_shift = k_shift + k_pad[:, t:t + S, :] * shift_k[:, ks - 1 - t][None, None, :]
        kv = k_shift * v
        L = 2 * S
        kv_pad = _pad(kv, ((0, 0), (0, S), (0, 0)))
        kf_pad = _pad(ssm_k, ((0, 0), (0, S)))
        kv_f = (lambda x, axes=(-2,-1): torch.fft.rfft2(x.float(), dim=axes))(kv_pad[:, None, :, :], axes=(1, 2))
        kf_f = (lambda x, axes=(-2,-1): torch.fft.rfft2(x.float(), dim=axes))(kf_pad[:, None, :], axes=(1, 2))
        kf_f = (lambda x, *d: x.permute(*d))(kf_f, 1, 2, 0)
        y_f = kv_f * kf_f[None, :, :, :]
        y = (lambda x, s, axes=(-2,-1): torch.fft.irfft2(x, s=s, dim=axes).to(torch.bfloat16))(y_f, (1, L), axes=(1, 2))[:, 0, :S, :]
        y = y + kv * ssm_D[None, None, :]
        return q * y

    def _B_ref(x, w1, b1, w2, b2):
        h = torch.einsum("bsd,df->bsf", x, w1) + b1
        h = _gelu(h)
        return torch.einsum("bsf,fd->bsd", h, w2) + b2

    x = A_q
    g = _sigmoid((x * gate_w).sum(-1, keepdims=True))
    a = _A_ref(x, A_k, A_v, A_shift_k, A_ssm_k, A_ssm_D)
    b = _B_ref(x, B_w1, B_b1, B_w2, B_b2)
    return g * a + (1 - g) * b
```

```python
NAME = "gated_mix__ssm_conv_h3__dense_activation_gelu__prompt"
ARG = dict(q=0, k=8, v=16, shk=24, ssmk=32, ssmD=40, bx=48, w1=56, b1=64, w2=72, b2=80, gw=88, out=96, dbg=104, ws=112)
SIZE = dict(q=2097152, k=2097152, v=2097152, shk=4096, ssmk=2097152, ssmD=1024, bx=2097152, w1=512*1376*2, b1=2752,
            w2=1376*512*2, b2=1024, gw=1024, out=2097152, dbg=256, ws=268435456)

class Asm:
    def __init__(self):
        self.lines = []
        self.nlab = 0
    def __call__(self, s=""):
        for l in s.split("\n"):
            self.lines.append("    " + l.strip() if l.strip() and not l.strip().endswith(":") else l.strip())
    def label(self, base="L"):
        self.nlab += 1
        return f"{base}_{self.nlab}"
    def text(self):
        return "\n".join(self.lines) + "\n"

def wrap(body, grid=256, block=512, lds=0, vgpr=256, sgpr=102, accum=None, header=""):
    if accum is None:
        accum = min(256, (vgpr + 3) // 4 * 4)
    k = NAME + "_kernel"
    return f"""{header}; @launch grid=({grid},1,1) block=({block},1,1) lds={lds}
.amdgcn_target "amdgcn-amd-amdhsa--gfx950"
.text
.globl {k}
.p2align 8
.type {k},@function
{k}:
{body}
.section .rodata,"a"
.p2align 6
.amdhsa_kernel {k}
  .amdhsa_next_free_vgpr {vgpr}
  .amdhsa_next_free_sgpr {sgpr}
  .amdhsa_accum_offset {accum}
  .amdhsa_group_segment_fixed_size 0
  .amdhsa_kernarg_size 120
  .amdhsa_user_sgpr_count 2
  .amdhsa_user_sgpr_kernarg_segment_ptr 1
  .amdhsa_system_sgpr_workgroup_id_x 1
  .amdhsa_float_denorm_mode_32 3
.end_amdhsa_kernel
"""
```

```python
import re
TRANS = ("v_exp_f32", "v_log_f32", "v_rcp_f32", "v_rsq_f32", "v_sqrt_f32", "v_sin_f32", "v_cos_f32")

def regs_of(tok):
    tok = tok.strip()
    tok = tok.lstrip("-")
    if tok.startswith("abs(") or tok.startswith("|"):
        tok = tok.replace("abs(", "").replace(")", "").replace("|", "")
    m = re.fullmatch(r"([vas])(\d+)", tok)
    if m: return {(m.group(1), int(m.group(2)))}
    m = re.fullmatch(r"([vas])\[(\d+):(\d+)\]", tok)
    if m: return {(m.group(1), i) for i in range(int(m.group(2)), int(m.group(3)) + 1)}
    if tok in ("vcc", "vcc_lo", "vcc_hi"): return {("s", "vcc")}
    if tok in ("exec", "exec_lo", "exec_hi"): return {("s", "exec")}
    if tok == "m0": return {("s", "m0")}
    return set()

class I:
    def __init__(self, text):
        self.text = text
        t = text.split(";")[0].strip()
        self.label = t.endswith(":")
        self.op = None
        self.w = set(); self.r = set()
        self.kind = "other"
        if not t or self.label or t.startswith("."):
            self.kind = "none"; return
        parts = t.split(None, 1)
        self.op = op = parts[0]
        rest = parts[1] if len(parts) > 1 else ""
        ops = [x.strip() for x in re.split(r",(?![^\[]*\])", rest)] if rest else []
        mods = ""
        if ops:
            last = ops[-1].split(None, 1)
            if len(last) > 1:
                ops[-1] = last[0]; mods = last[1]
        self.mods = mods
        R = [regs_of(o) for o in ops]
        self.states = 1
        if op == "s_nop":
            self.states = int(ops[0], 0) + 1; self.kind = "salu"; return
        if op.startswith("v_mfma"):
            self.kind = "mfma"
            self.passes = 8 if "32x32x16" in op else 4
            self.w = R[0]; self.ab = R[1] | R[2]; self.c = R[3]; self.r = self.ab | self.c
            return
        if op.startswith("v_"):
            self.kind = "valu"
            self.trans = op.replace("_e32", "").replace("_e64", "") in TRANS
            self.dot = op.startswith("v_dot")
            self.dpp = "_dpp" in op or "row_" in mods or "quad_perm" in mods or "wave_" in mods
            self.perm = op.startswith("v_permlane")
            self.rl = op.startswith("v_readlane") or op.startswith("v_readfirstlane")
            self.w = set(R[0]); srcs = R[1:]
            if op.startswith(("v_add_co", "v_sub_co", "v_addc_co", "v_subb_co", "v_subrev_co")):
                self.w |= R[1]; srcs = R[2:]
            for s in srcs: self.r |= s
            if op.startswith(("v_fmac", "v_dot2c", "v_writelane", "v_pk_fmac")) or self.dpp or "sdwa" in op:
                self.r |= R[0]
            if self.perm:
                self.w |= R[1]; self.r |= R[0]
            if self.dot:
                self.c = R[3] if len(R) > 3 else R[0]
                self.ab = R[1] | R[2]
            if op.startswith("v_cndmask") and len(ops) == 3: self.r |= {("s", "vcc")}
            return
        if op.startswith("ds_"):
            self.kind = "ds"
            if op.startswith(("ds_read", "ds_bpermute", "ds_permute", "ds_swizzle")):
                self.w = R[0]
                for s in R[1:]: self.r |= s
            else:
                for s in R: self.r |= s
            return
        if op.startswith(("buffer_", "global_", "flat_")):
            self.kind = "vmem"
            self.lds = bool(re.search(r"\blds\b", mods)) or "load_lds" in op
            self.store = "store" in op or "atomic" in op
            self.wide = self.store and ("x4" in op or "x3" in op)
            if op in ("buffer_inv", "buffer_wbl2"): return
            if self.lds:
                for s in R: self.r |= s
                self.r |= {("s", "m0")}
            elif self.store:
                for s in R: self.r |= s
                self.data = R[0] if op.startswith("buffer_") else R[1]
            else:
                self.w = R[0]
                for s in R[1:]: self.r |= s
            return
        if op.startswith("s_"):
            self.kind = "salu"
            if op.startswith(("s_cmp", "s_cbranch", "s_branch", "s_waitcnt", "s_barrier", "s_sleep", "s_setprio", "s_endpgm", "s_bitcmp")):
                for s in R: self.r |= s
            else:
                if R: self.w = R[0]
                for s in R[1:]: self.r |= s
                if "saveexec" in op: self.w = self.w | {("s", "exec")}
            return

def isv(s): return {x for x in s if x[0] in "va"}
def iss(s): return {x for x in s if x[0] == "s"}

def need(p, c):
    n = 0
    if p.kind == "valu":
        pv = isv(p.w); ps = iss(p.w)
        if c.kind == "mfma" and pv & c.r: n = max(n, 3 if p.dot else 2)
        if c.kind == "valu":
            if p.trans and not c.trans and pv & c.r: n = max(n, 1)
            if (c.perm or c.dpp) and pv & c.r: n = max(n, 2)
            if c.rl and pv & c.r: n = max(n, 1)
            if ps & c.r:
                n = max(n, 4 if (c.rl or c.op.startswith("v_writelane")) else 2)
            if p.dot and pv & (c.r | c.w):
                if c.op == p.op:
                    if pv & c.ab: n = max(n, 3)
                else: n = max(n, 3)
            if ("sdwa" in p.op or "op_sel" in p.mods) and pv & (c.r | c.w): n = max(n, 1)
        if c.kind in ("vmem", "ds") and p.dot and pv & c.r: n = max(n, 3)
        if c.kind == "vmem" and ps & c.r: n = max(n, 5)
        if c.kind == "salu" and ps & c.r: n = max(n, 1)
        if c.kind == "salu" and c.op.startswith("s_cbranch_vcc") and ("s", "vcc") in ps: n = max(n, 5)
    if p.kind == "mfma":
        big = p.passes == 8
        if c.kind == "mfma":
            if p.w & c.ab: n = max(n, 12 if big else 8)
            if p.w & c.c:
                if not (p.w == c.c and p.passes == c.passes): n = max(n, 10 if big else 6)
            elif p.w & c.w: n = max(n, 12 if big else 8)
        elif c.kind in ("valu", "vmem", "ds"):
            if p.w & (c.r | c.w): n = max(n, 12 if big else 8)
            if c.kind == "valu" and p.c & c.w: n = max(n, 7 if big else 3)
    if p.kind == "salu" and ("s", "m0") in p.w and c.kind == "vmem" and c.lds: n = max(n, 1)
    if p.kind == "vmem" and p.store and p.wide and (c.w & p.data): n = max(n, 2)
    if p.kind == "ds" and ("b128" in p.op or "b96" in p.op) and "write" in p.op and c.kind == "valu" and (c.w & p.r): n = max(n, 2)
    return n

def fix(lines, verbose=False):
    out = []
    nins = 0
    for l in lines:
        c = I(l)
        if c.kind != "none":
            dist = 0; req = 0
            for p in reversed(out):
                if p.kind == "none": continue
                if dist >= 20: break
                r = need(p, c) - dist
                if r > req: req = r; why = p.text
                dist += p.states
            if req > 0:
                if verbose: print(f"nop {req}: [{why.strip()}] -> [{l.strip()}]")
                out.append(I(f"    s_nop {req-1}")); nins += 1
        out.append(c)
    return [x.text for x in out], nins
```

```python
import sys, struct
from asmlib import *
import hz

STAMPS = "--stamps" in sys.argv
OUT = [x for x in sys.argv[1:] if not x.startswith("--")]
OUT = OUT[0] if OUT else "k.s"

FL_KV, FL_Y, FL_H, FL_E = 0, 1024, 2048, 4096
WS_G, WS_H, WS_KVT, WS_YT = 0x2000, 0x10000, 0x600000, 0x800000
EPOCH_INC = 0x9E3779B1
SLOT = 28672
KST = 4 * SLOT
UB = 155136
UP = 4352
CRED = 4 * SLOT
RED_P = 272
RED_Q = 64 * RED_P
YB = 5 * 16384
SRD = dict(q=8, k=12, v=16, shk=20, ssmk=24, w1=28, b1=32, w2=36, b2=40, gw=44, out=48, ws=52)
def srd(n): return f"s[{SRD[n]}:{SRD[n]+3}]"
sW, sX, sJ, sTB, sFS, sCG, sT0, sFLAG, sD = "s3", "s4", "s5", "s6", "s7", "s56", "s57", "s58", "s59"
sPR = "s62"
sA, sB, sC, sE = "s63", "s64", "s65", "s66"
sMX, sMW, sMW2 = "s67", "s68", "s69"
STAMP0 = 70

def f32(x): return "0x%08x" % struct.unpack("<I", struct.pack("<f", x))[0]

a = Asm()
class VM:
    def __init__(self): self.ops = []
    def issue(self, tag): self.ops.append(tag)
    def wait(self, *tags):
        idx = max(i for i, t in enumerate(self.ops) if t in tags)
        n = len(self.ops) - 1 - idx
        assert n < 64
        a(f"s_waitcnt vmcnt({n})")
    def reset(self): self.ops = []
vm = VM()
nstamp = [0]
def stamp():
    if STAMPS:
        r = STAMP0 + 4 + 2 * nstamp[0]
        assert r + 1 < 102
        a(f"s_memtime s[{r}:{r+1}]")
        nstamp[0] += 1

def vr(b, n=1): return f"v{b}" if n == 1 else f"v[{b}:{b+n-1}]"

vTID, vL = 0, 1
vT0, vT1, vT2, vT3 = 2, 3, 44, 45
vP = 4
vQ = 36
vB2 = 40
vOX0, vOX1, vOW, vOW2 = 46, 47, 48, 49
vXA0, vXA1, vWA0, vWA1 = 50, 51, 52, 53
vXB0, vXB1, vWB0, vWB1 = 54, 55, 56, 57
vL16 = 58
vFLAG = 59
vC1 = 60
vPOLL = 61
vT4, vT5 = 62, 63
PH = 64

def dma(voff, sr, soff, m0expr, tag, extra=""):
    sreg, c = m0expr
    a(f"s_add_u32 m0, {sreg}, {c}")
    a(f"buffer_load_dwordx4 v{voff}, {srd(sr)}, {soff} offen lds{extra}")
    vm.issue(tag)

def signal(soff_expr_fn):
    lab = a.label("Lsig")
    a(f"s_cmp_lg_u32 {sW}, 0")
    a(f"s_cbranch_scc1 {lab}")
    soff_expr_fn()
    a("s_mov_b64 exec, 1")
    a(f"buffer_store_dword v{vFLAG}, off, {srd('ws')}, {sA} sc1")
    a("s_mov_b64 exec, -1")
    a(lab + ":")

def poll_blocking(mask, soff):
    lab = a.label("Lpoll"); done = a.label("Lpolld")
    a(f"v_and_b32 v{vT0}, {mask}, v{vL}")
    a(f"v_lshlrev_b32 v{vT0}, 2, v{vT0}")
    a(f"s_mov_b32 {sB}, 0x40000")
    a(lab + ":")
    a(f"buffer_load_dword v{vPOLL}, v{vT0}, {srd('ws')}, {soff} offen sc1")
    a("s_waitcnt vmcnt(0)")
    a(f"v_cmp_ne_u32 vcc, v{vPOLL}, v{vFLAG}")
    a(f"s_cbranch_vccz {done}")
    a("s_sleep 2")
    a(f"s_sub_u32 {sB}, {sB}, 1")
    a(f"s_cbranch_scc0 {lab}")
    a(done + ":")
    vm.reset()

a("s_cmp_ge_u32 s2, 256")
a("s_cbranch_scc1 L_end")
if STAMPS:
    a(f"s_memrealtime s[{STAMP0}:{STAMP0+1}]")
    stamp()
for n in ("k", "v", "ssmk", "q", "w1", "ws", "shk", "b1", "b2", "w2", "gw", "out"):
    a(f"s_load_dwordx2 s[{SRD[n]}:{SRD[n]+1}], s[0:1], {ARG[n]}")
a(f"s_load_dwordx2 s[60:61], s[0:1], {ARG['ssmD']}")
a(f"v_lshrrev_b32 v{vT0}, 6, v0")
a(f"v_and_b32 v{vL}, 63, v0")
a(f"s_and_b32 {sX}, s2, 7")
a(f"v_readfirstlane_b32 {sW}, v{vT0}")
a(f"s_lshr_b32 {sJ}, s2, 3")
a(f"s_lshr_b32 {sA}, {sJ}, 4")
a(f"s_lshl_b32 {sTB}, {sX}, 1")
a(f"s_add_u32 {sTB}, {sTB}, {sA}")
a(f"s_and_b32 {sFS}, {sJ}, 15")
a(f"s_and_b32 {sCG}, {sJ}, 7")
a(f"s_lshr_b32 {sA}, {sJ}, 3")
a(f"s_lshl_b32 {sB}, {sX}, 2")
a(f"s_add_u32 {sA}, {sA}, {sB}")
a(f"s_lshl_b32 {sT0}, {sA}, 6")
a(f"s_lshl_b32 {sPR}, {sX}, 5")
a(f"s_add_u32 {sPR}, {sPR}, {sJ}")
for n in SRD:
    a(f"s_mov_b32 s{SRD[n]+2}, {SIZE[n]}")
    a(f"s_mov_b32 s{SRD[n]+3}, 0x20000")
a(f"v_lshlrev_b32 v{vL16}, 4, v{vL}")
vKO = PH; vKH = PH + 1
a(f"v_lshrrev_b32 v{vT0}, 3, v{vL}")
a(f"v_and_b32 v{vT1}, 7, v{vL}")
a(f"v_bfe_u32 v{vT2}, v{vL}, 4, 1")
a(f"v_lshlrev_b32 v{vT3}, 1, v{vT2}")
a(f"v_xor_b32 v{vT3}, v{vT3}, v{vT1}")
a(f"s_not_b32 {sA}, {sW}")
a(f"s_and_b32 {sA}, {sA}, 1")
a(f"s_lshl_b32 {sA}, {sA}, 2")
a(f"v_xor_b32 v{vT3}, {sA}, v{vT3}")
a(f"v_lshlrev_b32 v{vT3}, 4, v{vT3}")
a(f"v_lshl_add_u32 v{vKO}, v{vT0}, 10, v{vT3}")
a(f"s_lshl_b32 {sA}, {sJ}, 16")
a(f"s_lshl_b32 {sB}, {sW}, 13")
a(f"s_add_u32 {sA}, {sA}, {sB}")
a(f"s_lshl_b32 {sB}, {sX}, 7")
a(f"s_add_u32 {sA}, {sA}, {sB}")
a(f"v_add_u32 v{vKO}, {sA}, v{vKO}")
a(f"v_xor_b32 v{vKH}, 64, v{vKO}")
a(f"v_subrev_u32 v{vKH}, 0x2000, v{vKH}")
a(f"s_lshl_b32 {sMW2}, {sW}, 10")
a(f"v_lshrrev_b32 v{vT3}, 4, v{vL}")
a(f"v_xor_b32 v{vT3}, v{vT3}, v{vT1}")
a(f"v_lshlrev_b32 v{vT3}, 4, v{vT3}")
a(f"v_lshl_add_u32 v{vOX0}, v{vT0}, 10, v{vT3}")
a(f"s_lshl_b32 {sA}, {sTB}, 17")
a(f"s_lshl_b32 {sB}, {sW}, 14")
a(f"s_add_u32 {sA}, {sA}, {sB}")
a(f"v_add_u32 v{vOX0}, {sA}, v{vOX0}")
a(f"v_xor_b32 v{vOX1}, 64, v{vOX0}")
a(f"v_add_u32 v{vOX1}, 0x2000, v{vOX1}")
a(f"s_lshl_b32 {sMX}, {sW}, 11")
a(f"v_lshlrev_b32 v{vT3}, 2, v{vT2}")
a(f"v_xor_b32 v{vT3}, v{vT3}, v{vT1}")
a(f"v_lshlrev_b32 v{vT3}, 4, v{vT3}")
a(f"v_lshl_add_u32 v{vOW2}, v{vT0}, 10, v{vT3}")
a(f"s_lshl_b32 {sA}, {sW}, 13")
a(f"s_lshl_b32 {sB}, {sCG}, 7")
a(f"s_add_u32 {sA}, {sA}, {sB}")
a(f"v_add_u32 v{vOW2}, {sA}, v{vOW2}")
a(f"v_mul_u32_u24 v{vT0}, 43, v{vL}")
a(f"v_lshrrev_b32 v{vT0}, 9, v{vT0}")
a(f"v_mul_u32_u24 v{vT1}, 12, v{vT0}")
a(f"v_sub_u32 v{vT1}, v{vL}, v{vT1}")
a(f"s_and_b32 {sA}, {sW}, 1")
a(f"s_lshl_b32 {sA}, {sA}, 1")
a(f"v_xor_b32 v{vT1}, {sA}, v{vT1}")
a(f"v_lshlrev_b32 v{vT1}, 4, v{vT1}")
a(f"s_mul_i32 {sA}, {sFS}, 192")
a(f"v_add_u32 v{vT1}, {sA}, v{vT1}")
a(f"v_mul_u32_u24 v{vT0}, 2752, v{vT0}")
a(f"s_mul_i32 {sA}, {sW}, {8*2752}")
a(f"v_add3_u32 v{vOW}, v{vT0}, v{vT1}, {sA}")
a(f"v_mov_b32 v{vT0}, 0x80000000")
a(f"v_cmp_lt_u32 vcc, 2751, v{vT1}")
a(f"v_cndmask_b32 v{vOW}, v{vOW}, v{vT0}, vcc")
a(f"s_mul_i32 {sMW}, {sW}, {8*192}")
a("s_waitcnt lgkmcnt(0)")
a(f"s_load_dword {sFLAG}, s[{SRD['ws']}:{SRD['ws']+1}], {FL_E}")
a(f"s_lshl_b32 {sA}, {sPR}, 2")
a(f"s_load_dword {sD}, s[60:61], {sA}")
lab = a.label("Lhalo")
a(f"s_cmp_lg_u32 {sW}, 0")
a(f"s_cbranch_scc1 {lab}")
a(f"s_mov_b32 m0, {KST}")
a(f"buffer_load_dwordx4 v{vKH}, {srd('k')}, 0 offen lds")
a(lab + ":")
dma(vKO, 'k', 0, (sMW2, KST + 1024), 'kv')
dma(vKO, 'v', 0, (sMW2, KST + 8192 + 1024), 'kv')
a(f"s_lshl_b32 {sA}, {sPR}, 13")
a(f"s_add_u32 {sA}, {sA}, {sMW2}")
a(f"s_lshr_b32 {sB}, {sW}, 2")
a(f"s_lshl_b32 {sB}, {sB}, 8")
a(f"s_add_u32 {sB}, {sB}, {sMW2}")
dma(vL16, 'ssmk', sA, (sB, UB + 256), 'kv')
vSH = PH + 2
a(f"v_and_b32 v{vT0}, 15, v{vL}")
a(f"s_and_b32 {sA}, {sW}, 3")
a(f"s_lshl_b32 {sA}, {sA}, 4")
a(f"s_lshl_b32 {sB}, {sX}, 6")
a(f"s_add_u32 {sA}, {sA}, {sB}")
vCH = PH + 4
a(f"v_add_u32 v{vCH}, {sA}, v{vT0}")
a(f"v_lshlrev_b32 v{vT0}, 3, v{vCH}")
a(f"buffer_load_dwordx2 {vr(vSH,2)}, v{vT0}, {srd('shk')}, 0 offen"); vm.issue('kv')

vB1raw = PH + 6
a(f"v_lshrrev_b32 v{vT0}, 4, v{vL}")
a(f"v_lshlrev_b32 v{vT0}, 3, v{vT0}")
a(f"s_mul_i32 {sA}, {sFS}, 192")
a(f"s_lshr_b32 {sB}, {sW}, 2")
a(f"s_mul_i32 {sB}, {sB}, 96")
a(f"s_add_u32 {sA}, {sA}, {sB}")
for ft in range(3):
    a(f"buffer_load_dwordx2 {vr(vB1raw+2*ft,2)}, v{vT0}, {srd('b1')}, {sA} offen offset:{32*ft}"); vm.issue('kv')

def issue_chunk(c):
    sb = SLOT * (c % 5)
    dma(vOX0, 'q', c * 128 if c == 0 else sC, (sMX, sb), f'c{c}') if False else None
    a(f"s_movk_i32 {sC}, {128*c}")
    dma(vOX0, 'q', sC, (sMX, sb), f'c{c}')
    dma(vOX1, 'q', sC, (sMX, sb + 1024), f'c{c}')
    a(f"s_mov_b32 {sC}, {176128*c}")
    a(f"s_mov_b32 {sE}, {176128*c + 4*2752}")
    a("s_mov_b32 exec_hi, 0xffff")
    dma(vOW, 'w1', sC, (sMW, sb + 16384), f'c{c}')
    dma(vOW, 'w1', sE, (sMW, sb + 16384 + 768), f'c{c}')
    a("s_mov_b32 exec_hi, -1")

AREA_ORDER = [6, 5, 0, 1, 2, 3, 4, 7, 8, 9, 6]
def w2_unit(ldsu, ku, tag):
    a(f"s_mov_b32 {sC}, {65536*ku}")
    dma(vOW2, 'w2', sC, (sMW2, 8192 * ldsu), tag)
def w2_lds_units(units, tag):
    for u in units:
        rnd = AREA_ORDER.index(u // 2)
        w2_unit(u, 2 * rnd + (u & 1), tag)

isg = "L_gwg"
a(f"s_cmp_eq_u32 {sFS}, 15")
a(f"s_cbranch_scc1 L_skip_first")
for c in range(3): issue_chunk(c)
a("L_skip_first:")
a(f"v_lshrrev_b32 v{vT0}, 3, v0")
a(f"v_and_b32 v{vT1}, 7, v0")
a(f"v_lshlrev_b32 v{vT1}, 4, v{vT1}")
a(f"v_lshl_add_u32 v{vT0}, v{vT0}, 10, v{vT1}")
a(f"s_lshl_b32 {sA}, {sT0}, 10")
a(f"s_lshl_b32 {sB}, {sCG}, 7")
a(f"s_add_u32 {sA}, {sA}, {sB}")
a(f"buffer_load_dwordx4 {vr(vQ,4)}, v{vT0}, {srd('q')}, {sA} offen"); vm.issue('small')
a(f"buffer_load_dwordx4 {vr(vB2,4)}, v{vT1}, {srd('b2')}, {sB} offen"); vm.issue('small')
vZ = PH + 12
for i in range(4): a(f"v_mov_b32 v{vZ+i}, 0")
a(f"v_bfe_u32 v{vT0}, v{vL}, 4, 1")
a(f"v_mul_u32_u24 v{vT0}, {UP}, v{vT0}")
a(f"v_and_b32 v{vT1}, 15, v{vL}")
a(f"v_lshl_add_u32 v{vT0}, v{vT1}, 4, v{vT0}")
a(f"v_add_u32 v{vT0}, {UB}, v{vT0}")
a(f"ds_write_b128 v{vT0}, {vr(vZ,4)}")
vA0, vA1 = PH + 16, PH + 17
a(f"v_lshrrev_b32 v{vT0}, 4, v{vL}")
a(f"v_bfe_u32 v{vT1}, v{vL}, 2, 2")
a(f"v_lshl_add_u32 v{vT2}, v{vT0}, 3, v{vT1}")
a(f"v_lshlrev_b32 v{vT2}, 7, v{vT2}")
a(f"v_and_b32 v{vT3}, 3, v{vL}")
a(f"v_lshl_add_u32 v{vT2}, v{vT3}, 3, v{vT2}")
a(f"v_lshrrev_b32 v{vT1}, 1, v{vT1}")
a(f"v_and_b32 v{vT0}, 1, v{vT0}")
a(f"v_lshl_or_b32 v{vT1}, v{vT0}, 1, v{vT1}")
a(f"s_and_b32 {sA}, {sW}, 3")
a(f"v_xor_b32 v{vT1}, {sA}, v{vT1}")
a(f"v_lshl_add_u32 v{vA0}, v{vT1}, 5, v{vT2}")
a(f"s_lshr_b32 {sA}, {sW}, 2")
a(f"s_lshl_b32 {sA}, {sA}, 12")
a(f"s_add_u32 {sA}, {sA}, {KST + 4*128}")
a(f"v_add_u32 v{vA0}, {sA}, v{vA0}")
a(f"v_xor_b32 v{vA1}, 64, v{vA0}")
vPA = PH + 18
vSHIFT = PH + 23
a(f"v_bfe_u32 v{vT0}, v{vL}, 1, 1")
a(f"v_lshrrev_b32 v{vT1}, 2, v{vL}")
a(f"v_lshl_add_u32 v{vT0}, v{vT0}, 6, v{vT1}")
a(f"v_and_b32 v{vT1}, 1, v{vL}")
a(f"v_add_u32 v{vT0}, v{vT0}, v{vT1}")
a(f"v_lshlrev_b32 v{vT0}, 2, v{vT0}")
a(f"s_lshr_b32 {sA}, {sW}, 2")
a(f"s_mul_i32 {sA}, {sA}, {UP}")
a(f"s_and_b32 {sB}, {sW}, 3")
a(f"s_lshl_b32 {sB}, {sB}, 6")
a(f"s_add_u32 {sA}, {sA}, {sB}")
a(f"s_add_u32 {sA}, {sA}, {UB + 256 - 16}")
a(f"v_add_u32 v{vPA}, {sA}, v{vT0}")
for i in range(1, 5): a(f"v_add_u32 v{vPA+i}, {4*i}, v{vPA}")
a(f"v_xor_b32 v{vT1}, 1, v{vT1}")
a(f"v_lshlrev_b32 v{vSHIFT}, 4, v{vT1}")
vKVO = PH + 24
a(f"v_lshrrev_b32 v{vT0}, 1, v{vCH}")
a(f"v_lshlrev_b32 v{vT0}, 13, v{vT0}")
a(f"v_and_b32 v{vT1}, 1, v{vCH}")
a(f"v_lshl_add_u32 v{vT0}, v{vT1}, 6, v{vT0}")
a(f"v_lshrrev_b32 v{vT1}, 4, v{vL}")
a(f"v_lshl_add_u32 v{vKVO}, v{vT1}, 4, v{vT0}")
a(f"v_and_b32 v{vT0}, 15, v{vL}")
a(f"v_lshrrev_b32 v{vT1}, 1, v{vT0}")
a(f"v_lshrrev_b32 v{vT2}, 4, v{vL}")
a(f"v_xor_b32 v{vT1}, v{vT1}, v{vT2}")
a(f"v_lshlrev_b32 v{vT1}, 4, v{vT1}")
a(f"v_lshl_add_u32 v{vXA0}, v{vT0}, 7, v{vT1}")
a(f"s_and_b32 {sA}, {sW}, 3")
a(f"s_lshl_b32 {sA}, {sA}, 12")
a(f"v_add_u32 v{vXA0}, {sA}, v{vXA0}")
a(f"v_xor_b32 v{vXA1}, 64, v{vXA0}")
a(f"v_bfe_u32 v{vT0}, v{vL}, 2, 2")
a(f"v_lshl_add_u32 v{vT0}, v{vT2}, 3, v{vT0}")
a(f"v_mul_u32_u24 v{vT0}, 192, v{vT0}")
a(f"v_and_b32 v{vT1}, 3, v{vL}")
a(f"v_lshl_add_u32 v{vT0}, v{vT1}, 3, v{vT0}")
a(f"s_lshr_b32 {sA}, {sW}, 2")
a(f"s_mul_i32 {sB}, {sA}, 96")
a(f"s_add_u32 {sB}, {sB}, 16384")
a(f"v_add_u32 v{vT0}, {sB}, v{vT0}")
a(f"v_and_b32 v{vT1}, 1, v{vT2}")
a(f"s_lshl_b32 {sA}, {sA}, 6")
a(f"s_sub_u32 {sA}, 32, {sA}")
a(f"v_mul_lo_u32 v{vT1}, v{vT1}, {sA}")
a(f"v_add_u32 v{vWA0}, v{vT0}, v{vT1}")
a(f"v_sub_u32 v{vWA1}, v{vT0}, v{vT1}")
a(f"v_mov_b32 v{vC1}, {f32(-2*0.7978845608028654*1.4426950408889634*0.044715)}")
lab = a.label("Lw")
a(f"s_cmp_lg_u32 {sFS}, 15")
a(f"s_cbranch_scc1 {lab}")
a("s_waitcnt vmcnt(0)")
a(lab + ":")
vm.wait('kv')
a("s_waitcnt lgkmcnt(0)")
a(f"s_add_u32 {sFLAG}, {sFLAG}, {EPOCH_INC}")
a(f"v_mov_b32 v{vFLAG}, {sFLAG}")
a("s_barrier")
stamp()
vK = PH + 26
vV = PH + 32
a(f"ds_read_b64_tr_b16 {vr(vK,2)}, v{vA0}")
a(f"ds_read_b64_tr_b16 {vr(vK+2,2)}, v{vA1} offset:512")
a(f"ds_read_b64_tr_b16 {vr(vK+4,2)}, v{vA1} offset:1024")
a(f"ds_read_b64_tr_b16 {vr(vV,2)}, v{vA1} offset:{8192+512}")
a(f"ds_read_b64_tr_b16 {vr(vV+2,2)}, v{vA1} offset:{8192+1024}")
vPW = PH + 60
for i in range(5):
    for n in range(0, 8, 2):
        a(f"ds_read2st64_b32 {vr(vPW+8*i+n,2)}, v{vPA+i} offset0:{2*n} offset1:{2*n+2}")
        if i == 1 and n == 6: pass
vWo0, vWo1, vWe0, vWe1, vWe2 = PH+36, PH+37, PH+38, PH+39, PH+40
a(f"v_alignbit_b32 v{vWo0}, v{vSH}, v{vSH}, 16")
a(f"v_alignbit_b32 v{vWo1}, v{vSH+1}, v{vSH+1}, 16")
a(f"v_and_b32 v{vWe0}, 0xffff, v{vSH}")
a(f"v_mov_b32 v{vT0}, 0xffff")
a(f"v_bfi_b32 v{vWe1}, v{vT0}, v{vSH+1}, v{vSH}")
a(f"v_and_b32 v{vWe2}, 0xffff0000, v{vSH+1}")
a("s_waitcnt lgkmcnt(15)")
vKS = PH + 42
for p in range(4):
    a(f"v_dot2_f32_bf16 v{vKS+2*p}, v{vK+p}, v{vWe2}, 0")
    a(f"v_dot2_f32_bf16 v{vKS+2*p+1}, v{vK+p+1}, v{vWo1}, 0")
for p in range(4):
    a(f"v_dot2_f32_bf16 v{vKS+2*p}, v{vK+p+1}, v{vWe1}, v{vKS+2*p}")
    a(f"v_dot2_f32_bf16 v{vKS+2*p+1}, v{vK+p+2}, v{vWo0}, v{vKS+2*p+1}")
for p in range(4):
    a(f"v_dot2_f32_bf16 v{vKS+2*p}, v{vK+p+2}, v{vWe0}, v{vKS+2*p}")
vVF = PH + 50
for p in range(4):
    a(f"v_lshlrev_b32 v{vVF+2*p}, 16, v{vV+p}")
    a(f"v_and_b32 v{vVF+2*p+1}, 0xffff0000, v{vV+p}")
for e in range(8):
    a(f"v_mul_f32 v{vKS+e}, v{vKS+e}, v{vVF+e}")
vKVP = PH + 32
for d in range(4):
    a(f"v_cvt_pk_bf16_f32 v{vKVP+d}, v{vKS+7-2*d}, v{vKS+6-2*d}")
a(f"s_lshl_b32 {sA}, {sJ}, 8")
a(f"s_lshr_b32 {sB}, {sW}, 2")
a(f"s_lshl_b32 {sB}, {sB}, 7")
a(f"s_add_u32 {sA}, {sA}, {sB}")
a(f"s_add_u32 {sA}, {sA}, {WS_KVT}")
a(f"buffer_store_dwordx4 {vr(vKVP,4)}, v{vKVO}, {srd('ws')}, {sA} offen sc1"); vm.issue('kvst')
a("s_waitcnt lgkmcnt(0)")
for n in range(8):
    for i in range(4):
        a(f"v_alignbit_b32 v{vP+4*n+i}, v{vPW+8*(i+1)+n}, v{vPW+8*i+n}, v{vSHIFT}")
a("s_barrier")
stamp()
a(f"s_cmp_eq_u32 {sFS}, 15")
a(f"s_cbranch_scc1 {isg}")
issue_chunk(3); issue_chunk(4)
def kv_flag_off():
    a(f"s_lshl_b32 {sA}, {sX}, 7")
    a(f"s_lshl_b32 {sB}, {sJ}, 2")
    a(f"s_add_u32 {sA}, {sA}, {sB}")
vBIAS = PH + 12
vACC = PH + 24
vXF = PH + 48
vWF = PH + 64
for ft in range(3):
    for h in range(2):
        a(f"v_lshlrev_b32 v{vBIAS+4*ft+2*h}, 16, v{vB1raw+2*ft+h}")
        a(f"v_and_b32 v{vBIAS+4*ft+2*h+1}, 0xffff0000, v{vB1raw+2*ft+h}")
for c in range(8):
    sb = SLOT * (c % 5)
    vm.wait(f'c{c}')
    a("s_barrier")
    if c == 3:
        signal(kv_flag_off)
    if 1 <= c <= 3: issue_chunk(c + 4)
    if c == 4: w2_lds_units([11, 12, 13], 'w2a')
    if c == 6: w2_lds_units([0, 1, 2], 'w2a')
    if c == 7: w2_lds_units([3, 4, 5, 6], 'w2a')
    for (d, s) in ((vXB0, vXA0), (vXB1, vXA1), (vWB0, vWA0), (vWB1, vWA1)):
        a(f"v_add_u32 v{d}, {sb}, v{s}")
    for ks in range(2):
        for tt2 in range(2):
            a(f"ds_read_b128 {vr(vXF+8*ks+4*tt2,4)}, v{(vXB0,vXB1)[ks]} offset:{2048*tt2}")
        for ft in range(3):
            for u in range(2):
                a(f"ds_read_b64_tr_b16 {vr(vWF+12*ks+4*ft+2*u,2)}, v{(vWB0,vWB1)[ft&1]} offset:{32*ft + (32*ks+4*u)*192}")
    left = 16
    for ks in range(2):
        for ft in range(3):
            done = 8 * ks + 2 + 2 * (ft + 1)
            a(f"s_waitcnt lgkmcnt({16-done})")
            for tt2 in range(2):
                d = vr(vACC + 8*ft + 4*tt2, 4)
                cin = vr(vBIAS + 4*ft, 4) if (c == 0 and ks == 0) else d
                a(f"v_mfma_f32_16x16x32_bf16 {d}, {vr(vWF+12*ks+4*ft,4)}, {vr(vXF+8*ks+4*tt2,4)}, {cin}")
    if c in (2, 5): stamp()
stamp()
a("s_barrier")
C0 = f32(-2*0.7978845608028654*1.4426950408889634)
vG = PH + 48
vHP = PH + 64
for ft in range(3):
    base = vACC + 8 * ft
    for e in range(8): a(f"v_mul_f32 v{vG+e}, v{base+e}, v{base+e}")
    for e in range(8): a(f"v_fmaak_f32 v{vG+e}, v{vG+e}, v{vC1}, {C0}")
    for e in range(8): a(f"v_mul_f32 v{vG+e}, v{vG+e}, v{base+e}")
    for e in range(8): a(f"v_exp_f32 v{vG+e}, v{vG+e}")
    for e in range(8): a(f"v_add_f32 v{vG+e}, 1.0, v{vG+e}")
    for e in range(8): a(f"v_rcp_f32 v{vG+e}, v{vG+e}")
    for e in range(8): a(f"v_mul_f32 v{vG+e}, v{vG+e}, v{base+e}")
    hp = vHP + 4 * ft
    for d in range(4): a(f"v_cvt_pk_bf16_f32 v{hp+d}, v{vG+2*d}, v{vG+2*d+1}")
    a(f"v_permlane16_swap_b32 v{hp}, v{hp+2}")
    a(f"v_permlane16_swap_b32 v{hp+1}, v{hp+3}")
a(f"s_lshl_b32 {sA}, {sTB}, 2")
a(f"s_and_b32 {sB}, {sW}, 3")
a(f"s_add_u32 {sA}, {sA}, {sB}")
a(f"s_mul_i32 {sA}, {sA}, 86")
a(f"s_mul_i32 {sB}, {sFS}, 6")
a(f"s_lshr_b32 {sC}, {sW}, 2")
a(f"s_mul_i32 {sC}, {sC}, 3")
a(f"s_add_u32 {sB}, {sB}, {sC}")
a(f"s_add_u32 {sA}, {sA}, {sB}")
a(f"s_lshl_b32 {sA}, {sA}, 10")
a(f"s_add_u32 {sA}, {sA}, {WS_H}")
for ft in range(3):
    a(f"s_cmp_lt_u32 {sB}, {86-ft}")
    a(f"s_cselect_b32 {sC}, {sA}, 0x40000000")
    a(f"buffer_store_dwordx4 {vr(vHP+4*ft,4)}, v{vL16}, {srd('ws')}, {sC} offen offset:{1024*ft} sc1"); vm.issue('hst')
w2_lds_units([7, 8, 9, 10], 'w2b')
vm.wait('hst')
a("s_branch L_join")

a(isg + ":")
w2_lds_units(list(range(14)), 'w2a')
vGW = PH + 12; vGX = PH + 16
a(f"buffer_load_dwordx4 {vr(vGW,4)}, v{vL16}, {srd('gw')}, 0 offen")
a(f"s_lshl_b32 {sA}, {sTB}, 17")
a(f"s_lshl_b32 {sB}, {sW}, 14")
a(f"s_add_u32 {sA}, {sA}, {sB}")
for i in range(16):
    if i % 4 == 0 and i: a(f"s_add_u32 {sA}, {sA}, 4096")
    a(f"buffer_load_dwordx4 {vr(vGX+4*i,4)}, v{vL16}, {srd('q')}, {sA} offen offset:{1024*(i%4)}")
a("s_waitcnt vmcnt(0)")
a("s_barrier")
signal(kv_flag_off)
vGF = PH + 80; vGS = PH + 88; vGT = PH + 104
for d in range(4):
    a(f"v_lshlrev_b32 v{vGF+2*d}, 16, v{vGW+d}")
    a(f"v_and_b32 v{vGF+2*d+1}, 0xffff0000, v{vGW+d}")
for i in range(16):
    for d in range(4):
        a(f"v_lshlrev_b32 v{vGT+2*d}, 16, v{vGX+4*i+d}")
        a(f"v_and_b32 v{vGT+2*d+1}, 0xffff0000, v{vGX+4*i+d}")
    for e in range(8): a(f"v_mul_f32 v{vGT+e}, v{vGT+e}, v{vGF+e}")
    for d in range(4): a(f"v_cvt_pk_bf16_f32 v{vGT+2*d}, v{vGT+2*d}, v{vGT+2*d+1}")
    for d in range(4):
        a(f"v_and_b32 v{vGT+2*d+1}, 0xffff0000, v{vGT+2*d}")
        a(f"v_lshlrev_b32 v{vGT+2*d}, 16, v{vGT+2*d}")
    for d in range(4): a(f"v_add_f32 v{vGT+d}, v{vGT+d}, v{vGT+4+d}")
    a(f"v_add_f32 v{vGT}, v{vGT}, v{vGT+1}")
    a(f"v_add_f32 v{vGT+2}, v{vGT+2}, v{vGT+3}")
    a(f"v_add_f32 v{vGS+i}, v{vGT}, v{vGT+2}")
for md in ("row_shr:1 row_mask:0xf bank_mask:0xf bound_ctrl:0", "row_shr:2 row_mask:0xf bank_mask:0xf bound_ctrl:0",
           "row_shr:4 row_mask:0xf bank_mask:0xf bound_ctrl:0", "row_shr:8 row_mask:0xf bank_mask:0xf bound_ctrl:0",
           "row_bcast:15 row_mask:0xa bank_mask:0xf", "row_bcast:31 row_mask:0xc bank_mask:0xf"):
    for i in range(16):
        a(f"v_add_f32_dpp v{vGS+i}, v{vGS+i}, v{vGS+i} {md}")
a(f"v_mov_b32 v{vGT}, 0")
for i in range(16):
    a(f"v_readlane_b32 {sA}, v{vGS+i}, 63")
    a(f"v_writelane_b32 v{vGT}, {sA}, {i}")
a(f"v_cvt_pk_bf16_f32 v{vGT}, v{vGT}, v{vGT}")
a(f"v_lshlrev_b32 v{vGT}, 16, v{vGT}")
a(f"v_mul_f32 v{vGT}, {f32(-1.4426950408889634)}, v{vGT}")
a(f"v_exp_f32 v{vGT}, v{vGT}")
a(f"v_add_f32 v{vGT}, 1.0, v{vGT}")
a(f"v_rcp_f32 v{vGT}, v{vGT}")
a(f"v_cvt_pk_bf16_f32 v{vGT}, v{vGT}, v{vGT}")
a(f"v_lshlrev_b32 v{vGT}, 16, v{vGT}")
a(f"v_sub_f32 v{vGT+1}, 1.0, v{vGT}")
a(f"v_cvt_pk_bf16_f32 v{vGT+1}, v{vGT+1}, v{vGT+1}")
a(f"v_lshlrev_b32 v{vGT+1}, 16, v{vGT+1}")
a(f"s_lshl_b32 {sA}, {sTB}, 10")
a(f"s_lshl_b32 {sB}, {sW}, 7")
a(f"s_add_u32 {sA}, {sA}, {sB}")
a(f"s_add_u32 {sA}, {sA}, {WS_G}")
a(f"v_lshlrev_b32 v{vT0}, 3, v{vL}")
a("s_mov_b64 exec, 0xffff")
a(f"buffer_store_dwordx2 {vr(vGT,2)}, v{vT0}, {srd('ws')}, {sA} offen sc1")
a("s_mov_b64 exec, -1")
a("s_waitcnt vmcnt(0)")
if STAMPS:
    nstamp[0] -= 3
    for _ in range(3): stamp()
a("L_join:")
a("s_barrier")
def h_flag_off():
    a(f"s_lshl_b32 {sA}, {sTB}, 7")
    a(f"s_lshl_b32 {sB}, {sFS}, 2")
    a(f"s_add_u32 {sA}, {sA}, {sB}")
    a(f"s_add_u32 {sA}, {sA}, {FL_H}")
signal(h_flag_off)
stamp()
a(f"s_lshl_b32 {sE}, {sX}, 7")
poll_blocking(31, sE)
vU = PH
a(f"v_bfe_u32 v{vT0}, v0, 2, 6")
a(f"v_lshlrev_b32 v{vT0}, 7, v{vT0}")
a(f"v_and_b32 v{vT1}, 3, v0")
a(f"v_lshl_add_u32 v{vT0}, v{vT1}, 4, v{vT0}")
a(f"s_lshr_b32 {sB}, {sW}, 2")
a(f"s_lshl_b32 {sC}, {sB}, 6")
a(f"s_lshl_b32 {sA}, {sPR}, 13")
a(f"s_add_u32 {sA}, {sA}, {sC}")
a(f"s_add_u32 {sA}, {sA}, {WS_KVT}")
a(f"buffer_load_dwordx4 {vr(vU,4)}, v{vT0}, {srd('ws')}, {sA} offen sc1")
a(f"s_lshl_b32 {sB}, {sB}, 8")
a(f"s_add_u32 {sB}, {sB}, {sMW2}")
a(f"s_add_u32 {sB}, {sB}, {UB+256}")
a(f"v_add_u32 v{vT1}, {sB}, v{vL16}")
vSA = PH + 4
a(f"v_and_b32 v{vT2}, 15, v{vL}")
a(f"v_lshrrev_b32 v{vT3}, 4, v{vL}")
a(f"v_sub_u32 v{vSA}, v{vT2}, v{vT3}")
a(f"v_lshlrev_b32 v{vSA}, 4, v{vSA}")
a(f"s_lshr_b32 {sA}, {sW}, 2")
a(f"s_mul_i32 {sA}, {sA}, {UP}")
a(f"s_add_u32 {sA}, {sA}, {UB+256}")
a(f"s_and_b32 {sB}, {sW}, 3")
a(f"s_lshl_b32 {sC}, {sB}, 6")
a(f"s_sub_u32 {sC}, {sA}, {sC}")
a(f"v_add_u32 v{vSA}, {sC}, v{vSA}")
vUA = PH + 5
a(f"v_lshlrev_b32 v{vUA}, 4, v{vT2}")
a(f"v_lshlrev_b32 v{vT3}, 2, v{vT3}")
a(f"v_sub_u32 v{vUA}, v{vUA}, v{vT3}")
a(f"s_lshl_b32 {sB}, {sB}, 10")
a(f"s_add_u32 {sA}, {sA}, {sB}")
a(f"s_add_u32 {sA}, {sA}, 12")
a(f"v_add_u32 v{vUA}, {sA}, v{vUA}")
a("s_waitcnt vmcnt(0)")
a(f"ds_write_b128 v{vT1}, {vr(vU,4)}")
a("s_waitcnt lgkmcnt(0)")
a("s_barrier")
stamp()
vCA = PH + 6
vS = PH + 40
vUD = PH + 104
TORD = list(range(0, 16, 2)) + list(range(1, 16, 2))
for i, T in enumerate(TORD):
    if i < 15: a(f"ds_read_b128 {vr(vS+4*i,4)}, v{vSA} offset:{256*T}")
a(f"v_mov_b32 v{vCA+32}, 0")
a(f"v_mov_b32 v{vCA+33}, 0")
for i, T in enumerate(TORD):
    if i == 0:
        a("s_waitcnt lgkmcnt(14)")
        a(f"ds_read_b128 {vr(vS+60,4)}, v{vSA} offset:{256*TORD[15]}")
    else:
        a(f"s_waitcnt lgkmcnt({15-i})")
    for n in range((15 - T) // 2 + 1):
        d = vr(vCA + 2 * (2 * n + T), 4)
        a(f"v_mfma_f32_16x16x32_bf16 {d}, {vr(vP+4*n,4)}, {vr(vS+4*i,4)}, {'0' if T == 0 else d}")
for jj in range(4):
    a(f"ds_read_b32 v{vUD+jj}, v{vUA} offset:{256*jj}")
a("s_waitcnt lgkmcnt(0)")
a("s_barrier")
stamp()
vRA = PH + 4
lab_done = a.label("Lred")
labs = [a.label("Lt") for _ in range(4)]
a(f"s_lshr_b32 {sA}, {sW}, 2")
a(f"s_mul_i32 {sA}, {sA}, {4*3*2048}")
a(f"s_add_u32 {sA}, {sA}, {CRED}")
a(f"v_add_u32 v{vRA}, {sA}, v{vL16}")
a(f"s_and_b32 {sB}, {sW}, 3")
for t in range(1, 4):
    a(f"s_cmp_eq_u32 {sB}, {t}")
    a(f"s_cbranch_scc1 {labs[t]}")
vY = PH + 40
for t in range(4):
    a(labs[t] + ":")
    for g in range(4):
        if g == t: continue
        sl = (t - g - 1) & 3
        off = (g * 3 + sl) * 2048
        a(f"ds_write_b128 v{vRA}, {vr(vCA+8*g,4)} offset:{off}")
        a(f"ds_write_b128 v{vRA}, {vr(vCA+8*g+4,4)} offset:{off+1024}")
    for e in range(8): a(f"v_mov_b32 v{vY+e}, v{vCA+8*t+e}")
    if t < 3: a(f"s_branch {lab_done}")
a(lab_done + ":")
a(f"s_mul_i32 {sB}, {sB}, {3*2048}")
a(f"v_add_u32 v{vRA}, {sB}, v{vRA}")
a("s_waitcnt lgkmcnt(0)")
a("s_barrier")
vR = PH + 48
for i in range(6):
    a(f"ds_read_b128 {vr(vR+4*i,4)}, v{vRA} offset:{1024*i}")
a(f"s_lshr_b32 {sA}, {sW}, 2")
a(f"s_lshl_b32 {sA}, {sA}, 4")
a(f"s_lshr_b32 {sA}, {sD}, {sA}")
a(f"s_lshl_b32 {sA}, {sA}, 16")
vUF = PH + 72
for jj in range(4):
    a(f"v_and_b32 v{vUF+2*jj}, 0xffff0000, v{vUD+jj}")
    a(f"v_lshlrev_b32 v{vUF+2*jj+1}, 16, v{vUD+jj}")
for e in range(8): a(f"v_fmac_f32 v{vY+e}, {sA}, v{vUF+e}")
for s in range(3):
    a(f"s_waitcnt lgkmcnt({4-2*s})")
    for e in range(8): a(f"v_add_f32 v{vY+e}, v{vY+e}, v{vR+8*s+e}")
vYP = PH + 72
for jj in range(4): a(f"v_cvt_pk_bf16_f32 v{vYP+jj}, v{vY+2*jj}, v{vY+2*jj+1}")
a(f"v_permlane32_swap_b32 v{vYP}, v{vYP+2}")
a(f"v_permlane32_swap_b32 v{vYP+1}, v{vYP+3}")
a(f"v_permlane16_swap_b32 v{vYP}, v{vYP+1}")
a(f"v_permlane16_swap_b32 v{vYP+2}, v{vYP+3}")
a(f"s_lshl_b32 {sA}, {sPR}, 13")
a(f"s_add_u32 {sA}, {sA}, {sMW2}")
a(f"s_add_u32 {sA}, {sA}, {WS_YT}")
a(f"buffer_store_dwordx4 {vr(vYP,4)}, v{vL16}, {srd('ws')}, {sA} offen sc1")
a("s_waitcnt vmcnt(0)")
a("s_barrier")
def y_flag_off():
    kv_flag_off()
    a(f"s_add_u32 {sA}, {sA}, {FL_Y}")
signal(y_flag_off)
stamp()
vm.reset()
a(f"s_lshl_b32 {sE}, {sTB}, 7")
a(f"s_add_u32 {sE}, {sE}, {FL_H}")
poll_blocking(15, sE)
stamp()
vH = PH
vOA = PH + 88
vAF = PH + 120
vGG = PH + 152
vYL = PH + 156
vBA = [PH + 160, PH + 161]
vBB = [PH + 162, PH + 163]
a(f"s_lshr_b32 {sA}, {sT0}, 5")
a(f"s_lshr_b32 {sB}, {sW}, 2")
a(f"s_add_u32 {sA}, {sA}, {sB}")
a(f"s_mul_i32 {sA}, {sA}, 86")
a(f"s_and_b32 {sB}, {sW}, 3")
a(f"s_lshl_b32 {sC}, {sB}, 1")
a(f"s_add_u32 {sA}, {sA}, {sC}")
a(f"s_lshl_b32 {sA}, {sA}, 10")
a(f"s_add_u32 {sA}, {sA}, {WS_H}")
for rnd in range(11):
    if rnd == 10:
        a(f"s_cmp_eq_u32 {sB}, 3")
        a(f"s_cselect_b32 {sA}, 0x40000000, {sA}")
    for s2 in range(2):
        a(f"buffer_load_dwordx4 {vr(vH+8*rnd+4*s2,4)}, v{vL16}, {srd('ws')}, {sA} offen offset:{1024*s2} sc1"); vm.issue(f'h{rnd}')
    if rnd < 10: a(f"s_add_u32 {sA}, {sA}, 8192")
    if rnd == 3:
        w2_lds_units([14, 15, 16, 17, 18, 19], 'w2c')
a(f"v_lshrrev_b32 v{vT0}, 3, v0")
a(f"v_lshlrev_b32 v{vT0}, 3, v{vT0}")
a(f"s_lshl_b32 {sA}, {sT0}, 3")
a(f"s_add_u32 {sA}, {sA}, {WS_G}")
a(f"buffer_load_dwordx2 {vr(vGG,2)}, v{vT0}, {srd('ws')}, {sA} offen sc1"); vm.issue('g')
a(f"v_lshrrev_b32 v{vT0}, 5, v{vL}")
a(f"v_bfe_u32 v{vT1}, v{vL}, 2, 2")
a(f"v_lshl_add_u32 v{vT0}, v{vT0}, 3, v{vT1}")
a(f"v_lshlrev_b32 v{vT0}, 7, v{vT0}")
a(f"v_lshrrev_b32 v{vT1}, 1, v{vT1}")
a(f"v_lshl_add_u32 v{vT0}, v{vT1}, 6, v{vT0}")
a(f"v_bfe_u32 v{vT1}, v{vL}, 4, 1")
a(f"v_lshl_add_u32 v{vT0}, v{vT1}, 5, v{vT0}")
a(f"v_and_b32 v{vT1}, 3, v{vL}")
a(f"v_lshl_add_u32 v{vT0}, v{vT1}, 3, v{vT0}")
a(f"s_lshl_b32 {sB}, {sB}, 12")
a(f"v_add_u32 v{vBA[0]}, {sB}, v{vT0}")
a(f"v_xor_b32 v{vBA[1]}, 64, v{vBA[0]}")
def w2_reads(rnd):
    buf = vAF + 16 * (rnd & 1)
    base = 16384 * AREA_ORDER[rnd]
    for nt in range(2): a(f"v_add_u32 v{vBB[nt]}, {base}, v{vBA[nt]}")
    for s2 in range(2):
        for nt in range(2):
            for u in range(2):
                a(f"ds_read_b64_tr_b16 {vr(buf+8*s2+4*nt+2*u,2)}, v{vBB[nt]} offset:{(16*s2+4*u)*128}")
def g2_mfma(rnd, nlater):
    buf = vAF + 16 * (rnd & 1)
    vm.wait(f'h{rnd}')
    for s2 in range(2):
        a(f"s_waitcnt lgkmcnt({nlater + 4*(1-s2)})")
        for nt in range(2):
            d = vr(vOA + 16 * nt, 16)
            a(f"v_mfma_f32_32x32x16_bf16 {d}, {vr(buf+8*s2+4*nt,4)}, {vr(vH+8*rnd+4*s2,4)}, {'0' if (rnd == 0 and s2 == 0) else d}")
w2_reads(0)
for rnd in range(11):
    if rnd == 2:
        a("s_barrier")
        for u in range(2): w2_unit(12 + u, 20 + u, 'w2d')
    nxt = rnd + 1
    if nxt == 7:
        vm.wait('w2c'); a("s_barrier")
    if nxt == 10:
        vm.wait('w2d'); a("s_barrier")
    if nxt < 11:
        w2_reads(nxt); g2_mfma(rnd, 8)
    else:
        g2_mfma(rnd, 0)
stamp()
a(f"s_lshl_b32 {sE}, {sCG}, 7")
a(f"s_add_u32 {sE}, {sE}, {FL_Y}")
poll_blocking(31, sE)
a(f"v_lshrrev_b32 v{vT0}, 3, v0")
a(f"v_and_b32 v{vT1}, 7, v0")
a(f"v_lshlrev_b32 v{vT2}, 4, v{vT1}")
a(f"v_lshl_add_u32 v{vT2}, v{vT0}, 12, v{vT2}")
a(f"s_lshl_b32 {sA}, {sCG}, 18")
a(f"s_lshl_b32 {sB}, {sT0}, 1")
a(f"s_add_u32 {sA}, {sA}, {sB}")
a(f"s_add_u32 {sA}, {sA}, {WS_YT}")
a(f"buffer_load_dwordx4 {vr(vYL,4)}, v{vT2}, {srd('ws')}, {sA} offen sc1")
a(f"v_xor_b32 v{vT2}, {sW}, v{vT1}")
a(f"v_lshlrev_b32 v{vT2}, 4, v{vT2}")
a(f"v_lshl_add_u32 v{vT2}, v{vT1}, 10, v{vT2}")
a(f"v_and_b32 v{vT3}, 7, v{vT0}")
a(f"v_lshl_add_u32 v{vT2}, v{vT3}, 1, v{vT2}")
a(f"v_add_u32 v{vT2}, {YB}, v{vT2}")
a(f"v_and_b32 v{vT3}, 31, v{vL}")
a(f"v_mul_u32_u24 v{vT3}, {RED_P}, v{vT3}")
a(f"v_lshrrev_b32 v{vT4}, 5, v{vL}")
a(f"v_lshl_add_u32 v{vT3}, v{vT4}, 4, v{vT3}")
a(f"s_and_b32 {sA}, {sW}, 3")
a(f"s_mul_i32 {sA}, {sA}, {RED_Q}")
a(f"s_lshr_b32 {sB}, {sW}, 2")
a(f"s_mul_i32 {sB}, {sB}, {32*RED_P}")
a(f"s_add_u32 {sA}, {sA}, {sB}")
a(f"v_add_u32 v{vT3}, {sA}, v{vT3}")
for nt in range(2):
    for g in range(4):
        a(f"ds_write_b128 v{vT3}, {vr(vOA+16*nt+4*g,4)} offset:{128*nt+32*g}")
a("s_waitcnt vmcnt(0)")
for i in range(8):
    a(f"ds_write_b16{'_d16_hi' if i & 1 else ''} v{vT2}, v{vYL+i//2} offset:{128*i}")
a(f"v_mul_u32_u24 v{vT4}, {RED_P}, v{vT0}")
a(f"v_lshl_add_u32 v{vT4}, v{vT1}, 5, v{vT4}")
a(f"v_xor_b32 v{vT5}, {sW}, v{vT1}")
a(f"v_lshlrev_b32 v{vT5}, 4, v{vT5}")
a(f"v_lshl_add_u32 v{vT5}, v{vT0}, 7, v{vT5}")
a(f"v_add_u32 v{vT5}, {YB}, v{vT5}")
a(f"v_lshlrev_b32 v{vT1}, 4, v{vT1}")
a(f"v_lshl_add_u32 v{vT0}, v{vT0}, 10, v{vT1}")
a("s_waitcnt lgkmcnt(0)")
a("s_barrier")
stamp()
vF = PH
vYT = PH + 32
vE = PH + 36
vQF = PH + 44; vYF = PH + 52; vBF = PH + 60
a(f"ds_read_b128 {vr(vYT,4)}, v{vT5}")
for kq in range(4):
    for h in range(2):
        a(f"ds_read_b128 {vr(vF+8*kq+4*h,4)}, v{vT4} offset:{kq*RED_Q+16*h}")
for d in range(4):
    a(f"v_lshlrev_b32 v{vQF+2*d}, 16, v{vQ+d}")
    a(f"v_and_b32 v{vQF+2*d+1}, 0xffff0000, v{vQ+d}")
    a(f"v_lshlrev_b32 v{vBF+2*d}, 16, v{vB2+d}")
    a(f"v_and_b32 v{vBF+2*d+1}, 0xffff0000, v{vB2+d}")
for e in range(8): a(f"v_mul_f32 v{vQF+e}, v{vGG}, v{vQF+e}")
a("s_waitcnt lgkmcnt(8)")
for d in range(4):
    a(f"v_lshlrev_b32 v{vYF+2*d}, 16, v{vYT+d}")
    a(f"v_and_b32 v{vYF+2*d+1}, 0xffff0000, v{vYT+d}")
for e in range(8): a(f"v_mul_f32 v{vQF+e}, v{vQF+e}, v{vYF+e}")
for kq in range(4):
    a(f"s_waitcnt lgkmcnt({6-2*kq})")
    for e in range(8): a(f"v_add_f32 v{vBF+e}, v{vBF+e}, v{vF+8*kq+e}")
for e in range(8): a(f"v_fmac_f32 v{vQF+e}, v{vGG+1}, v{vBF+e}")
for d in range(4): a(f"v_cvt_pk_bf16_f32 v{vE+d}, v{vQF+2*d}, v{vQF+2*d+1}")
a(f"s_lshl_b32 {sA}, {sT0}, 10")
a(f"s_lshl_b32 {sB}, {sCG}, 7")
a(f"s_add_u32 {sA}, {sA}, {sB}")
a(f"buffer_store_dwordx4 {vr(vE,4)}, v{vT0}, {srd('out')}, {sA} offen")
lab = a.label("Lep"); lp = a.label("Lepl")
a(f"s_or_b32 {sA}, s2, {sW}")
a(f"s_cmp_lg_u32 {sA}, 0")
a(f"s_cbranch_scc1 {lab}")
a(f"s_mov_b32 {sB}, 0x40000")
a(lp + ":")
a(f"s_sub_u32 {sB}, {sB}, 1")
a(f"s_cbranch_scc1 {lab}")
a(f"buffer_load_dwordx4 {vr(vF,4)}, v{vL16}, {srd('ws')}, 0 offen sc1")
a("s_waitcnt vmcnt(0)")
a(f"v_xor_b32 v{vF}, v{vF}, v{vFLAG}")
for i in range(1, 4):
    a(f"v_xor_b32 v{vF+i}, v{vF+i}, v{vFLAG}")
    a(f"v_or_b32 v{vF}, v{vF}, v{vF+i}")
a(f"v_cmp_ne_u32 vcc, 0, v{vF}")
a(f"s_cbranch_vccnz {lp}")
a("s_mov_b64 exec, 1")
a(f"s_movk_i32 {sA}, {FL_E}")
a(f"buffer_store_dword v{vFLAG}, off, {srd('ws')}, {sA} sc1")
a("s_mov_b64 exec, -1")
a(lab + ":")
if STAMPS:
    a("s_waitcnt vmcnt(0)")
    stamp()
    a(f"s_memrealtime s[{STAMP0+2}:{STAMP0+3}]")
    a("s_waitcnt lgkmcnt(0)")
    nst = 2 + nstamp[0]
    a(f"s_cmp_lg_u32 {sW}, 0")
    a("s_cbranch_scc1 L_end")
    a("s_mov_b64 exec, 1")
    a(f"s_mul_i32 {sA}, s2, {nst*8}")
    a(f"s_add_u32 {sA}, {sA}, 0x8000000")
    for i in range(nst):
        a(f"v_mov_b32 v2, s{STAMP0+2*i}")
        a(f"v_mov_b32 v3, s{STAMP0+2*i+1}")
        a(f"buffer_store_dwordx2 v[2:3], off, {srd('ws')}, {sA} offset:{8*i}")
        a("s_nop 1")
    print("nstamps", nst)
a("L_end:")
a("s_endpgm")

lines, nins = hz.fix(a.lines, verbose="--v" in sys.argv)
print("nops inserted", nins, "lines", len(lines))
hdr = "".join(l for l in open("cdna_kernels/" + NAME + ".s.ref").read().splitlines(True) if l.startswith(";") and "@launch" not in l) if True else ""
open(OUT, "w").write(wrap("\n".join(lines) + "\n", grid=256, block=512, lds=163840, vgpr=256, header=hdr))
```

```python
import sys, struct
from asmlib import *
import hz

STAMPS = "--stamps" in sys.argv
STW = 0
for x in sys.argv:
    if x.startswith("--stw="): STW = int(x[6:])
OUT = [x for x in sys.argv[1:] if not x.startswith("--")]
OUT = OUT[0] if OUT else "k.s"

FL_KV, FL_Y, FL_H, FL_E = 0, 1024, 2048, 4096
WS_G, WS_H, WS_KVT, WS_YT = 0x2000, 0x10000, 0x600000, 0x800000
EPOCH_INC = 0x9E3779B1
SLOT = 28672
KST = 4 * SLOT
UB = 155136
UP = 4352
CRED = 4 * SLOT
RED_P = 272
RED_Q = 64 * RED_P
YB = 5 * 16384
SRD = dict(q=8, k=12, v=16, shk=20, ssmk=24, w1=28, b1=32, w2=36, b2=40, gw=44, out=48, ws=52)
def srd(n): return f"s[{SRD[n]}:{SRD[n]+3}]"
sW, sX, sJ, sTB, sFS, sCG, sT0, sFLAG, sD = "s3", "s4", "s5", "s6", "s7", "s56", "s57", "s58", "s59"
sPR = "s62"
sA, sB, sC, sE = "s63", "s64", "s65", "s66"
sMX, sMW, sMW2 = "s67", "s68", "s69"
STAMP0 = 70
NSTAMP = 14
def f32(x): return "0x%08x" % struct.unpack("<I", struct.pack("<f", x))[0]

a = Asm()
class VM:
    def __init__(self): self.ops = []
    def issue(self, tag): self.ops.append(tag)
    def wait(self, *tags):
        idx = max(i for i, t in enumerate(self.ops) if t in tags)
        n = len(self.ops) - 1 - idx
        assert n < 64, n
        a(f"s_waitcnt vmcnt({n})")
        self.ops = self.ops[idx + 1:]
    def reset(self): self.ops = []
vm = VM()
def stamp(i):
    if STAMPS:
        assert i < NSTAMP
        r = STAMP0 + 4 + 2 * i
        a(f"s_memtime s[{r}:{r+1}]")
def vr(b, n=1): return f"v{b}" if n == 1 else f"v[{b}:{b+n-1}]"
BARS = {}
def bar(role, name):
    BARS.setdefault(role, []).append(name)
    a(f"s_barrier    ; {name}")

def load_ptrs(names):
    for n in names: a(f"s_load_dwordx2 s[{SRD[n]}:{SRD[n]+1}], s[0:1], {ARG[n]}")
def set_srds(names):
    for n in names:
        a(f"s_mov_b32 s{SRD[n]+2}, {SIZE[n]}")
        a(f"s_mov_b32 s{SRD[n]+3}, 0x20000")
def finish(role_is_stamper):
    if STAMPS:
        a("s_waitcnt vmcnt(0)")
        stamp(NSTAMP - 1)
        a(f"s_branch L_stamps")
    else:
        a("s_endpgm")

vL = 1
vT0, vT1, vT2, vT3, vT4, vT5 = 2, 3, 4, 5, 6, 7
vL16 = 8
AREA_ORDER = [6, 5, 0, 1, 2, 3, 4, 7, 8, 9, 6]

a("s_cmp_ge_u32 s2, 256")
a("s_cbranch_scc1 L_end")
if STAMPS:
    a(f"s_memrealtime s[{STAMP0}:{STAMP0+1}]")
    stamp(0)
load_ptrs(["q", "w1", "k", "v", "ssmk", "w2", "ws"])
a(f"v_lshrrev_b32 v{vT0}, 6, v0")
a(f"v_and_b32 v{vL}, 63, v0")
a(f"s_and_b32 {sX}, s2, 7")
a(f"v_readfirstlane_b32 {sW}, v{vT0}")
a(f"s_lshr_b32 {sJ}, s2, 3")
a(f"s_lshr_b32 {sA}, {sJ}, 4")
a(f"s_lshl_b32 {sTB}, {sX}, 1")
a(f"s_add_u32 {sTB}, {sTB}, {sA}")
a(f"s_and_b32 {sFS}, {sJ}, 15")
a(f"s_and_b32 {sCG}, {sJ}, 7")
a(f"s_lshl_b32 {sPR}, {sX}, 5")
a(f"s_add_u32 {sPR}, {sPR}, {sJ}")
a(f"v_lshlrev_b32 v{vL16}, 4, v{vL}")
set_srds(["k", "v", "ssmk", "q", "w1", "w2", "ws"])
a(f"s_cmp_lt_u32 {sW}, 8")
a("s_cbranch_scc1 L_compute")
a(f"s_cmp_ge_u32 {sW}, 10")
a("s_cbranch_scc1 L_service")

R = "dma"
sDW = "s60"
vOX, vOW, vOW2 = 10, 18, 24
def ld(voff, sr, soff, off, tag):
    a(f"buffer_load_dwordx4 v{voff}, {srd(sr)}, {soff} offen offset:{off} lds")
    vm.issue(tag)
a(f"s_sub_u32 {sDW}, {sW}, 8")
a(f"v_lshrrev_b32 v{vT0}, 3, v{vL}")
a(f"v_and_b32 v{vT1}, 7, v{vL}")
a(f"v_lshrrev_b32 v{vT3}, 4, v{vL}")
a(f"v_xor_b32 v{vT3}, v{vT3}, v{vT1}")
a(f"v_lshlrev_b32 v{vT3}, 4, v{vT3}")
a(f"v_lshl_add_u32 v{vOX}, v{vT0}, 10, v{vT3}")
a(f"s_lshl_b32 {sA}, {sTB}, 17")
a(f"s_lshl_b32 {sB}, {sDW}, 16")
a(f"s_add_u32 {sA}, {sA}, {sB}")
a(f"s_cmp_eq_u32 {sFS}, 15")
a(f"s_cselect_b32 {sA}, 0x80000000, {sA}")
a(f"v_add_u32 v{vOX}, {sA}, v{vOX}")
a(f"v_xor_b32 v{vT3}, 64, v{vOX}")
for e in range(1, 8):
    a(f"v_add_u32 v{vOX+e}, {8192*e - 1024*(e%4)}, v{vT3 if e & 1 else vOX}")
a(f"s_lshl_b32 {sMX}, {sDW}, 13")
a(f"s_mul_i32 {sMW}, {sDW}, {32*192}")
def chunk_x(c):
    sb = SLOT * (c % 5)
    a(f"s_movk_i32 {sC}, {128*c}")
    for e in range(8):
        if e % 4 == 0: a(f"s_add_u32 m0, {sMX}, {sb + 1024*e}")
        ld(vOX + e, 'q', sC, 1024 * (e % 4), f'c{c}')
def chunk_w(c):
    sb = SLOT * (c % 5)
    a(f"s_mov_b32 {sC}, {176128*c}")
    for hh in range(2):
        a(f"s_add_u32 m0, {sMW}, {sb + 16384 + 3072*hh}")
        for m in range(3):
            ld(vOW + 3 * hh + m, 'w1', sC, 1024 * m, f'c{c}')
def issue_chunk(c):
    chunk_x(c); chunk_w(c)
a("s_waitcnt lgkmcnt(0)")
stamp(8)
chunk_x(0)
stamp(9)
a(f"s_mul_i32 {sA}, {sFS}, 192")
a(f"s_mul_i32 {sB}, {sDW}, {32*2752}")
a(f"v_mov_b32 v{vT5}, 0x80000000")
for m in range(3):
    a(f"v_add_u32 v{vT3}, {64*m}, v{vL}")
    a(f"v_mul_u32_u24 v{vT4}, 171, v{vT3}")
    a(f"v_lshrrev_b32 v{vT4}, 11, v{vT4}")
    a(f"v_mul_u32_u24 v{vOW+m}, 12, v{vT4}")
    a(f"v_sub_u32 v{vT3}, v{vT3}, v{vOW+m}")
    a(f"v_lshrrev_b32 v{vOW+m}, 3, v{vT4}")
    a(f"v_lshlrev_b32 v{vOW+m}, 1, v{vOW+m}")
    a(f"v_xor_b32 v{vT3}, v{vT3}, v{vOW+m}")
    a(f"v_lshl_add_u32 v{vT3}, v{vT3}, 4, {sA}")
    a(f"v_cmp_lt_u32 vcc, 2751, v{vT3}")
    a(f"v_mul_u32_u24 v{vT4}, 2752, v{vT4}")
    a(f"v_add3_u32 v{vOW+m}, v{vT4}, v{vT3}, {sB}")
    a(f"v_cndmask_b32 v{vOW+m}, v{vOW+m}, v{vT5}, vcc")
    if m < 2: a(f"s_sub_u32 {sB}, {sB}, 1024")
    a(f"v_add_u32 v{vOW+3+m}, {16*2752}, v{vOW+m}")
stamp(10)
chunk_w(0)
stamp(11)
issue_chunk(1)
a(f"v_bfe_u32 v{vT2}, v{vL}, 4, 1")
a(f"v_lshlrev_b32 v{vT3}, 2, v{vT2}")
a(f"v_xor_b32 v{vT3}, v{vT3}, v{vT1}")
a(f"v_lshlrev_b32 v{vT3}, 4, v{vT3}")
a(f"v_lshl_add_u32 v{vOW2}, v{vT0}, 10, v{vT3}")
a(f"s_lshl_b32 {sA}, {sDW}, 15")
a(f"s_lshl_b32 {sB}, {sCG}, 7")
a(f"s_add_u32 {sA}, {sA}, {sB}")
a(f"v_add_u32 v{vOW2}, {sA}, v{vOW2}")
for e in range(1, 4): a(f"v_add_u32 v{vOW2+e}, {7168*e}, v{vOW2}")
a(f"s_lshl_b32 {sMW2}, {sDW}, 12")
def w2_unit(ldsu, ku, tag):
    a(f"s_add_u32 m0, {sMW2}, {8192*ldsu}")
    a(f"s_mov_b32 {sC}, {65536*ku}")
    for e in range(4): ld(vOW2 + e, 'w2', sC, 1024 * e, tag)
def w2_lds_units(units, tag):
    for u in units:
        rnd = AREA_ORDER.index(u // 2)
        w2_unit(u, 2 * rnd + (u & 1), tag)
stamp(1)
bar(R, 'B1')
stamp(2)
issue_chunk(2); issue_chunk(3)
vm.wait('c0'); bar(R, 'G0')
for c in range(1, 8):
    if c + 3 <= 7: issue_chunk(c + 3)
    if c == 5: w2_lds_units([11, 12, 13], 'w2a')
    if c == 7: w2_lds_units([0, 1, 2], 'w2a')
    vm.wait(f'c{c}'); bar(R, f'G{c}')
    if c == 3: stamp(3)
stamp(4)
w2_lds_units([3, 4, 5, 6], 'w2a')
bar(R, 'G8')
w2_lds_units([7, 8, 9, 10], 'w2a')
stamp(5)
bar(R, 'C0')
bar(R, 'C1')
vm.wait('w2a')
stamp(6)
bar(R, 'C2'); bar(R, 'C3'); bar(R, 'C4'); bar(R, 'C5')
w2_lds_units([14, 15, 16, 17, 18, 19], 'w2c')
stamp(7)
bar(R, 'R2')
for u in range(2): w2_unit(12 + u, 20 + u, 'w2d')
vm.wait('w2c'); bar(R, 'R7')
vm.wait('w2d'); bar(R, 'R10')
finish(True)

a("L_service:")
R = "svc"; vm.reset()
sSV = "s60"
vFLAG, vPOLL, vPO = 10, 11, 12
vU = 16
a(f"s_sub_u32 {sSV}, {sW}, 10")
a(f"s_lshr_b32 {sA}, {sJ}, 3")
a(f"s_lshl_b32 {sB}, {sX}, 2")
a(f"s_add_u32 {sA}, {sA}, {sB}")
a(f"s_lshl_b32 {sT0}, {sA}, 6")
a("s_setprio 3")
vK0 = 32
a(f"v_lshrrev_b32 v{vT0}, 3, v{vL}")
a(f"v_and_b32 v{vT1}, 7, v{vL}")
a(f"v_bfe_u32 v{vT2}, v{vL}, 4, 1")
a(f"v_lshlrev_b32 v{vT3}, 1, v{vT2}")
a(f"v_xor_b32 v{vT3}, v{vT3}, v{vT1}")
a(f"v_lshlrev_b32 v{vT3}, 4, v{vT3}")
a(f"v_lshl_add_u32 v{vT3}, v{vT0}, 10, v{vT3}")
a(f"s_lshl_b32 {sA}, {sJ}, 16")
a(f"s_lshl_b32 {sB}, {sSV}, 15")
a(f"s_add_u32 {sA}, {sA}, {sB}")
a(f"s_lshl_b32 {sB}, {sX}, 7")
a(f"s_add_u32 {sA}, {sA}, {sB}")
a(f"v_add_u32 v{vT3}, {sA}, v{vT3}")
a(f"v_xor_b32 v{vK0}, 64, v{vT3}")
a(f"v_add_u32 v{vK0+1}, 7168, v{vT3}")
a(f"v_add_u32 v{vK0+2}, {2*7168}, v{vK0}")
a(f"v_add_u32 v{vK0+3}, {3*7168}, v{vT3}")
a(f"v_subrev_u32 v{vK0+4}, 0x2000, v{vT3}")
a(f"s_lshl_b32 {sMX}, {sSV}, 12")
a(f"s_lshl_b32 {sA}, {sPR}, 13")
a(f"s_add_u32 {sA}, {sA}, {sMX}")
a(f"s_mul_i32 {sB}, {sSV}, {UP}")
a(f"s_add_u32 m0, {sMX}, {KST+1024}")
a("s_waitcnt lgkmcnt(0)")
stamp(10)
a(f"s_load_dword {sFLAG}, s[{SRD['ws']}:{SRD['ws']+1}], {FL_E}")
for e in range(4): a(f"buffer_load_dwordx4 v{vK0+e}, {srd('k')}, 0 offen offset:{1024*e} lds")
a(f"s_add_u32 m0, {sMX}, {KST+8192+1024}")
for e in range(4): a(f"buffer_load_dwordx4 v{vK0+e}, {srd('v')}, 0 offen offset:{1024*e} lds")
lab = a.label("Lhalo")
a(f"s_cmp_lg_u32 {sSV}, 0")
a(f"s_cbranch_scc1 {lab}")
a(f"s_mov_b32 m0, {KST}")
a(f"buffer_load_dwordx4 v{vK0+4}, {srd('k')}, 0 offen lds")
a(lab + ":")
a(f"s_add_u32 m0, {sB}, {UB+256}")
for e in range(4): a(f"buffer_load_dwordx4 v{vL16}, {srd('ssmk')}, {sA} offen offset:{1024*e} lds")
stamp(11)
a("s_getpc_b64 s[20:21]")
a("L_pc:")
a(f"s_lshl_b32 {sA}, {sJ}, 10")
a(f"s_add_u32 {sA}, {sA}, L_compute-L_pc")
a(f"s_min_u32 {sA}, {sA}, L_codeend-L_pc-1024")
a(f"s_add_u32 s20, s20, {sA}")
a("s_addc_u32 s21, s21, 0")
a(f"global_load_dwordx4 {vr(vU,4)}, v{vL16}, s[20:21]")
for i in range(4): a(f"v_mov_b32 v{vU+4+i}, 0")
a(f"s_mul_i32 {sA}, {sSV}, {UP}")
a(f"s_add_u32 {sA}, {sA}, {UB}")
a(f"v_and_b32 v{vT0}, 0xf0, v{vL16}")
a(f"v_add_u32 v{vT0}, {sA}, v{vT0}")
a(f"ds_write_b128 v{vT0}, {vr(vU+4,4)}")
a(f"v_and_b32 v{vPO}, 31, v{vL}")
a(f"v_lshlrev_b32 v{vPO}, 2, v{vPO}")
a("s_waitcnt lgkmcnt(0)")
a(f"s_add_u32 {sFLAG}, {sFLAG}, {EPOCH_INC}")
a(f"v_mov_b32 v{vFLAG}, {sFLAG}")
def signal(fn):
    lab = a.label("Lsig")
    a(f"s_cmp_lg_u32 {sSV}, 0")
    a(f"s_cbranch_scc1 {lab}")
    fn()
    a("s_mov_b64 exec, 1")
    a(f"buffer_store_dword v{vFLAG}, off, {srd('ws')}, {sA} sc1")
    a("s_mov_b64 exec, -1")
    a(lab + ":")
def poll_issue(voff):
    a(f"buffer_load_dword v{vPOLL}, v{voff}, {srd('ws')}, {sE} offen sc1")
def poll_check(voff):
    lab = a.label("Lpoll"); done = a.label("Lpolld")
    a(f"s_mov_b32 {sB}, 0x40000")
    a(lab + ":")
    a("s_waitcnt vmcnt(0)")
    a(f"v_cmp_ne_u32 vcc, v{vPOLL}, v{vFLAG}")
    a(f"s_cbranch_vccz {done}")
    poll_issue(voff)
    a(f"s_sub_u32 {sB}, {sB}, 1")
    a(f"s_cbranch_scc0 {lab}")
    a(done + ":")
def kv_flag_off():
    a(f"s_lshl_b32 {sA}, {sX}, 7")
    a(f"s_lshl_b32 {sB}, {sJ}, 2")
    a(f"s_add_u32 {sA}, {sA}, {sB}")
def h_flag_off():
    a(f"s_lshl_b32 {sA}, {sTB}, 7")
    a(f"s_lshl_b32 {sB}, {sFS}, 2")
    a(f"s_add_u32 {sA}, {sA}, {sB}")
    a(f"s_add_u32 {sA}, {sA}, {FL_H}")
def y_flag_off():
    kv_flag_off()
    a(f"s_add_u32 {sA}, {sA}, {FL_Y}")
stamp(12)
a("s_waitcnt vmcnt(1)")
stamp(1)
bar(R, 'B1'); bar(R, 'G0'); bar(R, 'G1'); bar(R, 'G2'); bar(R, 'G3')
signal(kv_flag_off)
bar(R, 'G4'); bar(R, 'G5')
a(f"s_lshl_b32 {sE}, {sX}, 7")
poll_issue(vPO)
bar(R, 'G6'); bar(R, 'G7')
stamp(2)
poll_check(vPO)
stamp(3)
a(f"s_lshl_b32 {sA}, {sPR}, 13")
a(f"s_lshl_b32 {sB}, {sSV}, 12")
a(f"s_add_u32 {sA}, {sA}, {sB}")
a(f"s_add_u32 {sA}, {sA}, {WS_KVT}")
for e in range(4):
    a(f"buffer_load_dwordx4 {vr(vU+4*e,4)}, v{vL16}, {srd('ws')}, {sA} offen offset:{1024*e} sc1")
a(f"v_and_b32 v{vT0}, 1, v{vL}")
a(f"v_mul_u32_u24 v{vT0}, {UP}, v{vT0}")
a(f"v_lshrrev_b32 v{vT1}, 1, v{vL}")
a(f"v_lshl_add_u32 v{vT0}, v{vT1}, 4, v{vT0}")
a(f"s_lshl_b32 {sB}, {sSV}, 11")
a(f"s_add_u32 {sB}, {sB}, {UB+256}")
a(f"v_add_u32 v{vT0}, {sB}, v{vT0}")
bar(R, 'G8')
a("s_waitcnt vmcnt(0)")
for e in range(4):
    a(f"ds_write_b128 v{vT0}, {vr(vU+4*e,4)} offset:{512*e}")
a("s_waitcnt lgkmcnt(0)")
stamp(4)
bar(R, 'C0'); bar(R, 'C1')
signal(h_flag_off)
a(f"s_lshl_b32 {sE}, {sTB}, 7")
a(f"s_add_u32 {sE}, {sE}, {FL_H}")
a(f"v_and_b32 v{vT2}, 60, v{vPO}")
stamp(5)
poll_issue(vT2); poll_check(vT2)
stamp(6)
bar(R, 'C2')
lab = a.label("Lep"); lp = a.label("Lepl")
a(f"s_or_b32 {sA}, s2, {sSV}")
a(f"s_cmp_lg_u32 {sA}, 0")
a(f"s_cbranch_scc1 {lab}")
a(f"s_mov_b32 {sB}, 0x40000")
a(lp + ":")
a(f"s_sub_u32 {sB}, {sB}, 1")
a(f"s_cbranch_scc1 {lab}")
a(f"buffer_load_dwordx4 {vr(vU,4)}, v{vL16}, {srd('ws')}, 0 offen sc1")
a("s_waitcnt vmcnt(0)")
a(f"v_xor_b32 v{vU}, v{vU}, v{vFLAG}")
for i in range(1, 4):
    a(f"v_xor_b32 v{vU+i}, v{vU+i}, v{vFLAG}")
    a(f"v_or_b32 v{vU}, v{vU}, v{vU+i}")
a(f"v_cmp_ne_u32 vcc, 0, v{vU}")
a(f"s_cbranch_vccnz {lp}")
a("s_mov_b64 exec, 1")
a(f"s_movk_i32 {sA}, {FL_E}")
a(f"buffer_store_dword v{vFLAG}, off, {srd('ws')}, {sA} sc1")
a("s_mov_b64 exec, -1")
a(lab + ":")
bar(R, 'C3'); bar(R, 'C4'); bar(R, 'C5'); bar(R, 'R2')
signal(y_flag_off)
a(f"s_lshl_b32 {sE}, {sCG}, 7")
a(f"s_add_u32 {sE}, {sE}, {FL_Y}")
poll_issue(vPO)
bar(R, 'R7')
stamp(7)
poll_check(vPO)
stamp(8)
a(f"v_lshrrev_b32 v{vT0}, 3, v{vL}")
a(f"v_and_b32 v{vT1}, 7, v{vL}")
a(f"v_lshlrev_b32 v{vT2}, 4, v{vT1}")
a(f"v_lshl_add_u32 v{vT2}, v{vT0}, 12, v{vT2}")
a(f"s_lshl_b32 {sA}, {sCG}, 18")
a(f"s_lshl_b32 {sB}, {sT0}, 1")
a(f"s_add_u32 {sA}, {sA}, {sB}")
a(f"s_lshl_b32 {sB}, {sSV}, 17")
a(f"s_add_u32 {sA}, {sA}, {sB}")
a(f"s_add_u32 {sA}, {sA}, {WS_YT}")
for e in range(4):
    a(f"buffer_load_dwordx4 {vr(vU+4*e,4)}, v{vT2}, {srd('ws')}, {sA} offen sc1")
    if e < 3: a(f"s_add_u32 {sA}, {sA}, 32768")
a(f"v_lshlrev_b32 v{vT3}, 10, v{vT1}")
a(f"v_lshl_add_u32 v{vT3}, v{vT0}, 1, v{vT3}")
a(f"v_add_u32 v{vT3}, {YB}, v{vT3}")
a(f"s_lshl_b32 {sB}, {sSV}, 2")
a(f"v_xor_b32 v{vT1}, {sB}, v{vT1}")
vYA = 32
for e in range(4):
    a(f"v_xor_b32 v{vYA+e}, {e}, v{vT1}")
    a(f"v_lshl_add_u32 v{vYA+e}, v{vYA+e}, 4, v{vT3}")
bar(R, 'R10')
for e in range(4):
    a(f"s_waitcnt vmcnt({3-e})")
    for i in range(8):
        a(f"ds_write_b16{'_d16_hi' if i & 1 else ''} v{vYA+e}, v{vU+4*e+i//2} offset:{128*i}")
a("s_waitcnt lgkmcnt(0)")
stamp(9)
a("s_barrier  ; F1")
finish(True)

a(".p2align 6")
a("L_compute:")
R = "cmp"; vm.reset()
vXA0, vXA1, vWA0, vWA1 = 10, 11, 12, 13
vXB0, vXB1, vWB0, vWB1 = 14, 15, 16, 17
vC1 = 9
vP = 18
PH = 50
a("s_setprio 1")
load_ptrs(["shk", "b1", "b2", "gw", "out"])
a(f"s_load_dwordx2 s[60:61], s[0:1], {ARG['ssmD']}")
set_srds(["shk", "b1", "b2", "gw", "out"])
a(f"s_lshr_b32 {sA}, {sJ}, 3")
a(f"s_lshl_b32 {sB}, {sX}, 2")
a(f"s_add_u32 {sA}, {sA}, {sB}")
a(f"s_lshl_b32 {sT0}, {sA}, 6")
a(f"s_lshl_b32 {sMW2}, {sW}, 10")
vSH = PH; vCH = PH + 2; vB1raw = PH + 4
a(f"v_and_b32 v{vT0}, 15, v{vL}")
a(f"s_and_b32 {sA}, {sW}, 3")
a(f"s_lshl_b32 {sA}, {sA}, 4")
a(f"s_lshl_b32 {sB}, {sX}, 6")
a(f"s_add_u32 {sA}, {sA}, {sB}")
a(f"v_add_u32 v{vCH}, {sA}, v{vT0}")
a(f"v_lshlrev_b32 v{vT0}, 3, v{vCH}")
a(f"v_lshrrev_b32 v{vT1}, 4, v{vL}")
a(f"v_lshlrev_b32 v{vT1}, 3, v{vT1}")
a(f"s_mul_i32 {sA}, {sFS}, 192")
a(f"s_lshr_b32 {sB}, {sW}, 2")
a(f"s_mul_i32 {sB}, {sB}, 96")
a(f"s_add_u32 {sA}, {sA}, {sB}")
a(f"s_lshl_b32 {sB}, {sPR}, 2")
a("s_waitcnt lgkmcnt(0)")
a(f"s_load_dword {sD}, s[60:61], {sB}")
a(f"buffer_load_dwordx2 {vr(vSH,2)}, v{vT0}, {srd('shk')}, 0 offen")
for ft in range(3):
    a(f"buffer_load_dwordx2 {vr(vB1raw+2*ft,2)}, v{vT1}, {srd('b1')}, {sA} offen offset:{32*ft}")
vA0, vA1 = PH + 10, PH + 11
a(f"v_lshrrev_b32 v{vT0}, 4, v{vL}")
a(f"v_bfe_u32 v{vT1}, v{vL}, 2, 2")
a(f"v_lshl_add_u32 v{vT2}, v{vT0}, 3, v{vT1}")
a(f"v_lshlrev_b32 v{vT2}, 7, v{vT2}")
a(f"v_and_b32 v{vT3}, 3, v{vL}")
a(f"v_lshl_add_u32 v{vT2}, v{vT3}, 3, v{vT2}")
a(f"v_lshrrev_b32 v{vT1}, 1, v{vT1}")
a(f"v_and_b32 v{vT0}, 1, v{vT0}")
a(f"v_lshl_or_b32 v{vT1}, v{vT0}, 1, v{vT1}")
a(f"s_and_b32 {sA}, {sW}, 3")
a(f"v_xor_b32 v{vT1}, {sA}, v{vT1}")
a(f"v_lshl_add_u32 v{vA0}, v{vT1}, 5, v{vT2}")
a(f"s_lshr_b32 {sA}, {sW}, 2")
a(f"s_lshl_b32 {sA}, {sA}, 12")
a(f"s_add_u32 {sA}, {sA}, {KST + 4*128}")
a(f"v_add_u32 v{vA0}, {sA}, v{vA0}")
a(f"v_xor_b32 v{vA1}, 64, v{vA0}")
vPA = PH + 12; vSHIFT = PH + 17
a(f"v_bfe_u32 v{vT0}, v{vL}, 1, 1")
a(f"v_lshrrev_b32 v{vT1}, 2, v{vL}")
a(f"v_lshl_add_u32 v{vT0}, v{vT0}, 6, v{vT1}")
a(f"v_and_b32 v{vT1}, 1, v{vL}")
a(f"v_add_u32 v{vT0}, v{vT0}, v{vT1}")
a(f"v_lshlrev_b32 v{vT0}, 2, v{vT0}")
a(f"s_lshr_b32 {sA}, {sW}, 2")
a(f"s_mul_i32 {sA}, {sA}, {UP}")
a(f"s_and_b32 {sB}, {sW}, 3")
a(f"s_lshl_b32 {sB}, {sB}, 6")
a(f"s_add_u32 {sA}, {sA}, {sB}")
a(f"s_add_u32 {sA}, {sA}, {UB + 256 - 16}")
a(f"v_add_u32 v{vPA}, {sA}, v{vT0}")
for i in range(1, 5): a(f"v_add_u32 v{vPA+i}, {4*i}, v{vPA}")
a(f"v_xor_b32 v{vT1}, 1, v{vT1}")
a(f"v_lshlrev_b32 v{vSHIFT}, 4, v{vT1}")
vKVO = PH + 18
a(f"v_lshrrev_b32 v{vT0}, 1, v{vCH}")
a(f"v_lshlrev_b32 v{vT0}, 13, v{vT0}")
a(f"v_and_b32 v{vT1}, 1, v{vCH}")
a(f"v_lshl_add_u32 v{vT0}, v{vT1}, 4, v{vT0}")
a(f"v_lshrrev_b32 v{vT1}, 4, v{vL}")
a(f"v_lshl_add_u32 v{vKVO}, v{vT1}, 5, v{vT0}")
a(f"v_and_b32 v{vT0}, 15, v{vL}")
a(f"v_lshrrev_b32 v{vT1}, 1, v{vT0}")
a(f"v_lshrrev_b32 v{vT2}, 4, v{vL}")
a(f"v_xor_b32 v{vT1}, v{vT1}, v{vT2}")
a(f"v_lshlrev_b32 v{vT1}, 4, v{vT1}")
a(f"v_lshl_add_u32 v{vXA0}, v{vT0}, 7, v{vT1}")
a(f"s_and_b32 {sA}, {sW}, 3")
a(f"s_lshl_b32 {sA}, {sA}, 12")
a(f"v_add_u32 v{vXA0}, {sA}, v{vXA0}")
a(f"v_xor_b32 v{vXA1}, 64, v{vXA0}")
a(f"v_bfe_u32 v{vT0}, v{vL}, 2, 2")
a(f"v_lshl_add_u32 v{vT0}, v{vT2}, 3, v{vT0}")
a(f"v_mul_u32_u24 v{vT0}, 192, v{vT0}")
a(f"v_and_b32 v{vT1}, 3, v{vL}")
a(f"v_lshl_add_u32 v{vT0}, v{vT1}, 3, v{vT0}")
a(f"s_lshr_b32 {sA}, {sW}, 2")
a(f"s_mul_i32 {sB}, {sA}, 96")
a(f"s_add_u32 {sB}, {sB}, 16384")
a(f"v_add_u32 v{vT0}, {sB}, v{vT0}")
a(f"v_and_b32 v{vT1}, 1, v{vT2}")
a(f"s_lshl_b32 {sA}, {sA}, 6")
a(f"s_sub_u32 {sA}, 32, {sA}")
a(f"v_mul_lo_u32 v{vT1}, v{vT1}, {sA}")
a(f"v_add_u32 v{vWA0}, v{vT0}, v{vT1}")
a(f"v_sub_u32 v{vWA1}, v{vT0}, v{vT1}")
a(f"v_mov_b32 v{vC1}, {f32(-2*0.7978845608028654*1.4426950408889634*0.044715)}")
a(f"s_lshl_b32 {sA}, {sJ}, 8")
a(f"s_lshr_b32 {sB}, {sW}, 2")
a(f"s_lshl_b32 {sB}, {sB}, 7")
a(f"s_add_u32 {sA}, {sA}, {sB}")
a(f"s_add_u32 {sE}, {sA}, {WS_KVT}")
vWo0, vWo1, vWe0, vWe1, vWe2 = PH+30, PH+31, PH+32, PH+33, PH+34
a("s_waitcnt vmcnt(0) lgkmcnt(0)")
a(f"v_alignbit_b32 v{vWo0}, v{vSH}, v{vSH}, 16")
a(f"v_alignbit_b32 v{vWo1}, v{vSH+1}, v{vSH+1}, 16")
a(f"v_and_b32 v{vWe0}, 0xffff, v{vSH}")
a(f"v_mov_b32 v{vT0}, 0xffff")
a(f"v_bfi_b32 v{vWe1}, v{vT0}, v{vSH+1}, v{vSH}")
a(f"v_and_b32 v{vWe2}, 0xffff0000, v{vSH+1}")
vACC = PH + 92
for ft in range(3):
    for h in range(2):
        for tt2 in range(2):
            a(f"v_lshlrev_b32 v{vACC+8*ft+4*tt2+2*h}, 16, v{vB1raw+2*ft+h}")
            a(f"v_and_b32 v{vACC+8*ft+4*tt2+2*h+1}, 0xffff0000, v{vB1raw+2*ft+h}")
stamp(1)
bar(R, 'B1')
stamp(2)
vK = PH + 20; vV = PH + 26
a(f"ds_read_b64_tr_b16 {vr(vK,2)}, v{vA0}")
a(f"ds_read_b64_tr_b16 {vr(vK+2,2)}, v{vA1} offset:512")
a(f"ds_read_b64_tr_b16 {vr(vK+4,2)}, v{vA1} offset:1024")
a(f"ds_read_b64_tr_b16 {vr(vV,2)}, v{vA1} offset:{8192+512}")
a(f"ds_read_b64_tr_b16 {vr(vV+2,2)}, v{vA1} offset:{8192+1024}")
vPW = PH + 52
def p_reads(ns):
    for n in ns:
        for i in range(5):
            a(f"ds_read2st64_b32 {vr(vPW+8*i+n,2)}, v{vPA+i} offset0:{2*n} offset1:{2*n+2}")
p_reads([0, 2])
a("s_waitcnt lgkmcnt(10)")
vKS = PH + 36
for p in range(4):
    a(f"v_dot2_f32_bf16 v{vKS+2*p}, v{vK+p}, v{vWe2}, 0")
    a(f"v_dot2_f32_bf16 v{vKS+2*p+1}, v{vK+p+1}, v{vWo1}, 0")
for p in range(4):
    a(f"v_dot2_f32_bf16 v{vKS+2*p}, v{vK+p+1}, v{vWe1}, v{vKS+2*p}")
    a(f"v_dot2_f32_bf16 v{vKS+2*p+1}, v{vK+p+2}, v{vWo0}, v{vKS+2*p+1}")
for p in range(4):
    a(f"v_dot2_f32_bf16 v{vKS+2*p}, v{vK+p+2}, v{vWe0}, v{vKS+2*p}")
p_reads([4, 6])
vVF = PH + 44
for p in range(4):
    a(f"v_lshlrev_b32 v{vVF+2*p}, 16, v{vV+p}")
    a(f"v_and_b32 v{vVF+2*p+1}, 0xffff0000, v{vV+p}")
for e in range(8):
    a(f"v_mul_f32 v{vKS+e}, v{vKS+e}, v{vVF+e}")
vKVP = PH + 26
for d in range(4):
    a(f"v_cvt_pk_bf16_f32 v{vKVP+d}, v{vKS+7-2*d}, v{vKS+6-2*d}")
a(f"buffer_store_dwordx4 {vr(vKVP,4)}, v{vKVO}, {srd('ws')}, {sE} offen sc1")
def p_align(ns):
    for n in ns:
        for i in range(4):
            a(f"v_alignbit_b32 v{vP+4*n+i}, v{vPW+8*(i+1)+n}, v{vPW+8*i+n}, v{vSHIFT}")
a("s_waitcnt lgkmcnt(10)")
p_align(range(4))
a("s_waitcnt lgkmcnt(0)")
p_align(range(4, 8))
stamp(3)
a(f"s_cmp_eq_u32 {sFS}, 15")
a("s_cbranch_scc1 L_gwg")
vF0 = PH; vF1 = [PH + 20, PH + 40]
def g1_reads(c, ks, dst):
    for tt2 in range(2):
        a(f"ds_read_b128 {vr(dst+4*tt2,4)}, v{(vXB0,vXB1)[ks]} offset:{2048*tt2}")
    for ft in range(3):
        for u in range(2):
            a(f"ds_read_b64_tr_b16 {vr(dst+8+4*ft+2*u,2)}, v{(vWB0,vWB1)[ft&1]} offset:{32*ft + (32*ks+4*u)*192}")
def g1_mfma(src, waits=None):
    for ft in range(3):
        if waits is not None: a(f"s_waitcnt lgkmcnt({waits - 2*ft})")
        for tt2 in range(2):
            d = vr(vACC + 8*ft + 4*tt2, 4)
            a(f"v_mfma_f32_16x16x32_bf16 {d}, {vr(src+8+4*ft,4)}, {vr(src+4*tt2,4)}, {d}")
for c in range(8):
    sb = SLOT * (c % 5)
    for (d, s) in ((vXB0, vXA0), (vXB1, vXA1), (vWB0, vWA0), (vWB1, vWA1)):
        a(f"v_add_u32 v{d}, {sb}, v{s}")
    if c == 3: a("s_waitcnt vmcnt(0)")
    bar(R, f'G{c}')
    if c == 4: stamp(4)
    g1_reads(c, 0, vF0)
    g1_reads(c, 1, vF1[c & 1])
    if c > 0: g1_mfma(vF1[(c - 1) & 1])
    g1_mfma(vF0, waits=12)
    a("s_waitcnt lgkmcnt(0)")
bar(R, 'G8')
stamp(5)
g1_mfma(vF1[1])
C0 = f32(-2*0.7978845608028654*1.4426950408889634)
vG = PH; vHP = PH + 8
a(f"s_lshl_b32 {sA}, {sTB}, 2")
a(f"s_and_b32 {sB}, {sW}, 3")
a(f"s_add_u32 {sA}, {sA}, {sB}")
a(f"s_mul_i32 {sA}, {sA}, 86")
a(f"s_mul_i32 {sB}, {sFS}, 6")
a(f"s_lshr_b32 {sC}, {sW}, 2")
a(f"s_mul_i32 {sC}, {sC}, 3")
a(f"s_add_u32 {sB}, {sB}, {sC}")
a(f"s_add_u32 {sA}, {sA}, {sB}")
a(f"s_lshl_b32 {sA}, {sA}, 10")
a(f"s_add_u32 {sA}, {sA}, {WS_H}")
for ft in range(3):
    base = vACC + 8 * ft
    for e in range(8): a(f"v_mul_f32 v{vG+e}, v{base+e}, v{base+e}")
    for e in range(8): a(f"v_fmaak_f32 v{vG+e}, v{vG+e}, v{vC1}, {C0}")
    for e in range(8): a(f"v_mul_f32 v{vG+e}, v{vG+e}, v{base+e}")
    for e in range(8): a(f"v_exp_f32 v{vG+e}, v{vG+e}")
    for e in range(8): a(f"v_add_f32 v{vG+e}, 1.0, v{vG+e}")
    for e in range(8): a(f"v_rcp_f32 v{vG+e}, v{vG+e}")
    for e in range(8): a(f"v_mul_f32 v{vG+e}, v{vG+e}, v{base+e}")
    hp = vHP + 4 * ft
    for d in range(4): a(f"v_cvt_pk_bf16_f32 v{hp+d}, v{vG+2*d}, v{vG+2*d+1}")
    a(f"s_cmp_lt_u32 {sB}, {86-ft}")
    a(f"s_cselect_b32 {sC}, {sA}, 0x40000000")
    a(f"v_permlane16_swap_b32 v{hp}, v{hp+2}")
    a(f"v_permlane16_swap_b32 v{hp+1}, v{hp+3}")
    a(f"buffer_store_dwordx4 {vr(hp,4)}, v{vL16}, {srd('ws')}, {sC} offen offset:{1024*ft} sc1")
a("L_join:")
stamp(6)
vSA, vUA, vRA = vXA0, vXA1, vWA0
a(f"v_and_b32 v{vT2}, 15, v{vL}")
a(f"v_lshrrev_b32 v{vT3}, 4, v{vL}")
a(f"v_sub_u32 v{vSA}, v{vT2}, v{vT3}")
a(f"v_lshlrev_b32 v{vSA}, 4, v{vSA}")
a(f"s_lshr_b32 {sA}, {sW}, 2")
a(f"s_mul_i32 {sA}, {sA}, {UP}")
a(f"s_add_u32 {sA}, {sA}, {UB+256}")
a(f"s_and_b32 {sB}, {sW}, 3")
a(f"s_lshl_b32 {sC}, {sB}, 6")
a(f"s_sub_u32 {sC}, {sA}, {sC}")
a(f"v_add_u32 v{vSA}, {sC}, v{vSA}")
NS = 6
vH = PH + 20
vCA = PH + 24
vS = PH
vHa = PH + 58
vUD = 164
TORD = list(range(0, 16, 2)) + list(range(1, 16, 2))
def s_read(i): a(f"ds_read_b128 {vr(vS+4*(i%NS),4)}, v{vSA} offset:{256*TORD[i]}")
bar(R, 'C0')
for i in range(NS): s_read(i)
a(f"v_lshlrev_b32 v{vUA}, 4, v{vT2}")
a(f"v_lshlrev_b32 v{vT3}, 2, v{vT3}")
a(f"v_sub_u32 v{vUA}, v{vUA}, v{vT3}")
a(f"s_lshl_b32 {sB}, {sB}, 10")
a(f"s_add_u32 {sA}, {sA}, {sB}")
a(f"s_add_u32 {sA}, {sA}, 12")
a(f"v_add_u32 v{vUA}, {sA}, v{vUA}")
a(f"v_mov_b32 v{vCA+32}, 0")
a(f"v_mov_b32 v{vCA+33}, 0")
a(f"s_lshr_b32 {sE}, {sT0}, 5")
a(f"s_lshr_b32 {sB}, {sW}, 2")
a(f"s_add_u32 {sE}, {sE}, {sB}")
a(f"s_mul_i32 {sE}, {sE}, 86")
a(f"s_and_b32 {sB}, {sW}, 3")
a(f"s_lshl_b32 {sC}, {sB}, 1")
a(f"s_add_u32 {sE}, {sE}, {sC}")
a(f"s_lshl_b32 {sE}, {sE}, 10")
a(f"s_add_u32 {sE}, {sE}, {WS_H}")
def hreg(rnd):
    if rnd < 7: return vHa + 8 * rnd
    if rnd < 9: return vP + 8 * (rnd - 7)
    return vHa + 8 * (rnd - 9)
hl = [0]
def h_load():
    rnd, s2 = divmod(hl[0], 2); hl[0] += 1
    if rnd == 10 and s2 == 0:
        a(f"s_and_b32 {sC}, {sW}, 3")
        a(f"s_cmp_eq_u32 {sC}, 3")
        a(f"s_cselect_b32 {sE}, 0x40000000, {sE}")
    a(f"buffer_load_dwordx4 {vr(hreg(rnd)+4*s2,4)}, v{vL16}, {srd('ws')}, {sE} offen offset:{1024*s2} sc1"); vm.issue(f'h{rnd}')
    if s2 == 1 and rnd < 10: a(f"s_add_u32 {sE}, {sE}, 8192")
C1_AT, C2_AT = 4, 10
cnt = 0
for i, T in enumerate(TORD):
    if i == C1_AT:
        a("s_waitcnt vmcnt(0)"); bar(R, 'C1')
    if i == C2_AT:
        bar(R, 'C2'); stamp(7)
    out = min(NS, 16 - i) - 1
    a(f"s_waitcnt lgkmcnt({out})")
    for n in range((15 - T) // 2 + 1):
        d = vr(vCA + 2 * (2 * n + T), 4)
        a(f"v_mfma_f32_16x16x32_bf16 {d}, {vr(vP+4*n,4)}, {vr(vS+4*(i%NS),4)}, {'0' if T == 0 else d}")
        if i >= C2_AT:
            cnt += 1
            if cnt % 3 == 0: h_load()
    if i + NS < 16: s_read(i + NS)
for jj in range(4):
    a(f"ds_read_b32 v{vUD+jj}, v{vUA} offset:{256*jj}")
h_load()
a(f"s_lshr_b32 {sA}, {sW}, 2")
a(f"s_mul_i32 {sA}, {sA}, {4*3*2048}")
a(f"s_add_u32 {sA}, {sA}, {CRED}")
a(f"v_add_u32 v{vRA}, {sA}, v{vL16}")
a(f"s_and_b32 {sB}, {sW}, 3")
a("s_waitcnt lgkmcnt(0)")
bar(R, 'C3')
stamp(8)
lab_done = a.label("Lred")
labs = [a.label("Lt") for _ in range(4)]
for t in range(1, 4):
    a(f"s_cmp_eq_u32 {sB}, {t}")
    a(f"s_cbranch_scc1 {labs[t]}")
vY = vP + 16
for t in range(4):
    a(labs[t] + ":")
    for g in range(4):
        if g == t: continue
        sl = (t - g - 1) & 3
        off = (g * 3 + sl) * 2048
        a(f"ds_write_b128 v{vRA}, {vr(vCA+8*g,4)} offset:{off}")
        a(f"ds_write_b128 v{vRA}, {vr(vCA+8*g+4,4)} offset:{off+1024}")
    for e in range(8): a(f"v_mov_b32 v{vY+e}, v{vCA+8*t+e}")
    if t < 3: a(f"s_branch {lab_done}")
a(lab_done + ":")
h_load(); h_load()
a(f"s_mul_i32 {sB}, {sB}, {3*2048}")
a(f"v_add_u32 v{vRA}, {sB}, v{vRA}")
a(f"s_lshr_b32 {sA}, {sW}, 2")
a(f"s_lshl_b32 {sA}, {sA}, 4")
a(f"s_lshr_b32 {sA}, {sD}, {sA}")
a(f"s_lshl_b32 {sA}, {sA}, 16")
vUF = vP + 24
for jj in range(4):
    a(f"v_and_b32 v{vUF+2*jj}, 0xffff0000, v{vUD+jj}")
    a(f"v_lshlrev_b32 v{vUF+2*jj+1}, 16, v{vUD+jj}")
for e in range(8): a(f"v_fmac_f32 v{vY+e}, {sA}, v{vUF+e}")
a("s_waitcnt lgkmcnt(0)")
bar(R, 'C4')
vR = vS
for i in range(6):
    a(f"ds_read_b128 {vr(vR+4*i,4)}, v{vRA} offset:{1024*i}")
h_load(); h_load()
for s in range(3):
    a(f"s_waitcnt lgkmcnt({4-2*s})")
    if s == 2: bar(R, 'C5')
    for e in range(8): a(f"v_add_f32 v{vY+e}, v{vY+e}, v{vR+8*s+e}")
vYP = vUF
for jj in range(4): a(f"v_cvt_pk_bf16_f32 v{vYP+jj}, v{vY+2*jj}, v{vY+2*jj+1}")
a(f"s_lshl_b32 {sA}, {sPR}, 13")
a(f"s_add_u32 {sA}, {sA}, {sMW2}")
a(f"s_add_u32 {sA}, {sA}, {WS_YT}")
a(f"v_permlane32_swap_b32 v{vYP}, v{vYP+2}")
a(f"v_permlane32_swap_b32 v{vYP+1}, v{vYP+3}")
a(f"v_permlane16_swap_b32 v{vYP}, v{vYP+1}")
a(f"v_permlane16_swap_b32 v{vYP+2}, v{vYP+3}")
a(f"buffer_store_dwordx4 {vr(vYP,4)}, v{vL16}, {srd('ws')}, {sA} offen sc1"); vm.issue('yst')
stamp(9)
vOA = PH + 26
vAF = [PH - 8 + 0, PH + 8]
vBA = [vXA0, vXA1]; vBB = [vXB0, vXB1]
vQ = vP + 16
vB2 = vP + 20
vGG = 164
a(f"v_lshrrev_b32 v{vT0}, 5, v{vL}")
a(f"v_bfe_u32 v{vT1}, v{vL}, 2, 2")
a(f"v_lshl_add_u32 v{vT0}, v{vT0}, 3, v{vT1}")
a(f"v_lshlrev_b32 v{vT0}, 7, v{vT0}")
a(f"v_lshrrev_b32 v{vT1}, 1, v{vT1}")
a(f"v_lshl_add_u32 v{vT0}, v{vT1}, 6, v{vT0}")
a(f"v_bfe_u32 v{vT1}, v{vL}, 4, 1")
a(f"v_lshl_add_u32 v{vT0}, v{vT1}, 5, v{vT0}")
a(f"v_and_b32 v{vT1}, 3, v{vL}")
a(f"v_lshl_add_u32 v{vT0}, v{vT1}, 3, v{vT0}")
a(f"s_and_b32 {sB}, {sW}, 3")
a(f"s_lshl_b32 {sB}, {sB}, 12")
a(f"v_add_u32 v{vBA[0]}, {sB}, v{vT0}")
a(f"v_xor_b32 v{vBA[1]}, 64, v{vBA[0]}")
def w2_reads(rnd):
    buf = vAF[rnd & 1]
    base = 16384 * AREA_ORDER[rnd]
    for nt in range(2): a(f"v_add_u32 v{vBB[nt]}, {base}, v{vBA[nt]}")
    for s2 in range(2):
        for nt in range(2):
            for u in range(2):
                a(f"ds_read_b64_tr_b16 {vr(buf+8*s2+4*nt+2*u,2)}, v{vBB[nt]} offset:{(16*s2+4*u)*128}")
def g2_mfma(rnd, nlater, loads):
    buf = vAF[rnd & 1]
    if f'h{rnd}' in vm.ops: vm.wait(f'h{rnd}')
    for s2 in range(2):
        a(f"s_waitcnt lgkmcnt({nlater + 4*(1-s2)})")
        for nt in range(2):
            d = vr(vOA + 16 * nt, 16)
            a(f"v_mfma_f32_32x32x16_bf16 {d}, {vr(buf+8*s2+4*nt,4)}, {vr(hreg(rnd)+4*s2,4)}, {'0' if (rnd == 0 and s2 == 0) else d}")
        if loads: loads.pop(0)()
w2_reads(0)
a(f"v_lshrrev_b32 v{vT0}, 3, v0")
a(f"v_and_b32 v{vT1}, 7, v0")
a(f"v_lshlrev_b32 v{vT2}, 4, v{vT1}")
a(f"v_lshl_add_u32 v{vWA1}, v{vT0}, 10, v{vT2}")
a(f"v_lshlrev_b32 v{vT3}, 3, v{vT0}")
a(f"s_lshl_b32 {sMX}, {sT0}, 10")
a(f"s_lshl_b32 {sMW}, {sCG}, 7")
a(f"s_add_u32 {sMX}, {sMX}, {sMW}")
a(f"s_lshl_b32 {sA}, {sT0}, 3")
a(f"s_add_u32 {sA}, {sA}, {WS_G}")
def ld_q(): a(f"buffer_load_dwordx4 {vr(vQ,4)}, v{vWA1}, {srd('q')}, {sMX} offen"); vm.issue('sm')
def ld_b2(): a(f"buffer_load_dwordx4 {vr(vB2,4)}, v{vT2}, {srd('b2')}, {sMW} offen"); vm.issue('sm')
def ld_g(): a(f"buffer_load_dwordx2 {vr(vGG,2)}, v{vT3}, {srd('ws')}, {sA} offen sc1"); vm.issue('sm')
pend = [h_load] * (22 - hl[0]) + [ld_q, ld_b2, ld_g]
print("H loads issued before gemm2:", hl[0])
for rnd in range(11):
    if rnd == 2:
        vm.wait('yst'); bar(R, 'R2')
    nxt = rnd + 1
    if nxt == 7: bar(R, 'R7')
    if nxt == 10: bar(R, 'R10')
    if nxt < 11:
        w2_reads(nxt); g2_mfma(rnd, 8, pend)
    else:
        g2_mfma(rnd, 0, pend)
    assert hl[0] <= 2 * (rnd + 10), "H ring overwrite"
assert not pend
stamp(10)
a(f"v_and_b32 v{vT3}, 31, v{vL}")
a(f"v_mul_u32_u24 v{vT3}, {RED_P}, v{vT3}")
a(f"v_lshrrev_b32 v{vT4}, 5, v{vL}")
a(f"v_lshl_add_u32 v{vT3}, v{vT4}, 4, v{vT3}")
a(f"s_and_b32 {sA}, {sW}, 3")
a(f"s_mul_i32 {sA}, {sA}, {RED_Q}")
a(f"s_lshr_b32 {sB}, {sW}, 2")
a(f"s_mul_i32 {sB}, {sB}, {32*RED_P}")
a(f"s_add_u32 {sA}, {sA}, {sB}")
a(f"v_add_u32 v{vT3}, {sA}, v{vT3}")
a(f"v_mul_u32_u24 v{vT4}, {RED_P}, v{vT0}")
a(f"v_lshl_add_u32 v{vT4}, v{vT1}, 5, v{vT4}")
a(f"v_xor_b32 v{vT5}, {sW}, v{vT1}")
a(f"v_lshlrev_b32 v{vT5}, 4, v{vT5}")
a(f"v_lshl_add_u32 v{vT5}, v{vT0}, 7, v{vT5}")
a(f"v_add_u32 v{vT5}, {YB}, v{vT5}")
vYT = 108; vQF = 112; vYF = 120; vBF = 128; vF = 42; vE = 136
for nt in range(2):
    for g in range(4):
        a(f"ds_write_b128 v{vT3}, {vr(vOA+16*nt+4*g,4)} offset:{128*nt+32*g}")
a("s_waitcnt vmcnt(0)")
for d in range(4):
    a(f"v_lshlrev_b32 v{vQF+2*d}, 16, v{vQ+d}")
    a(f"v_and_b32 v{vQF+2*d+1}, 0xffff0000, v{vQ+d}")
    a(f"v_lshlrev_b32 v{vBF+2*d}, 16, v{vB2+d}")
    a(f"v_and_b32 v{vBF+2*d+1}, 0xffff0000, v{vB2+d}")
for e in range(8): a(f"v_mul_f32 v{vQF+e}, v{vGG}, v{vQF+e}")
a("s_waitcnt lgkmcnt(0)")
a("s_barrier")
stamp(11)
a(f"ds_read_b128 {vr(vYT,4)}, v{vT5}")
for kq in range(4):
    for h in range(2):
        a(f"ds_read_b128 {vr(vF+8*kq+4*h,4)}, v{vT4} offset:{kq*RED_Q+16*h}")
a("s_waitcnt lgkmcnt(8)")
for d in range(4):
    a(f"v_lshlrev_b32 v{vYF+2*d}, 16, v{vYT+d}")
    a(f"v_and_b32 v{vYF+2*d+1}, 0xffff0000, v{vYT+d}")
for e in range(8): a(f"v_mul_f32 v{vQF+e}, v{vQF+e}, v{vYF+e}")
for kq in range(4):
    a(f"s_waitcnt lgkmcnt({6-2*kq})")
    for e in range(8): a(f"v_add_f32 v{vBF+e}, v{vBF+e}, v{vF+8*kq+e}")
for e in range(8): a(f"v_fmac_f32 v{vQF+e}, v{vGG+1}, v{vBF+e}")
for d in range(4): a(f"v_cvt_pk_bf16_f32 v{vE+d}, v{vQF+2*d}, v{vQF+2*d+1}")
a(f"buffer_store_dwordx4 {vr(vE,4)}, v{vWA1}, {srd('out')}, {sMX} offen")
stamp(12)
finish(True)
a("L_codeend:")

a("L_gwg:")
vGX = PH; vGW = PH + 32; vGT = PH + 64
a(f"v_lshrrev_b32 v{vT0}, 2, v{vL}")
a(f"v_and_b32 v{vT1}, 3, v{vL}")
a(f"v_lshlrev_b32 v{vT1}, 4, v{vT1}")
a(f"v_lshl_add_u32 v{vT2}, v{vT0}, 10, v{vT1}")
a(f"s_lshl_b32 {sA}, {sTB}, 17")
a(f"s_lshl_b32 {sB}, {sW}, 14")
a(f"s_add_u32 {sA}, {sA}, {sB}")
for ps in range(2):
    for i in range(8):
        a(f"buffer_load_dwordx4 {vr(vGX+4*i,4)}, v{vT2}, {srd('q')}, {sA} offen offset:{512*ps+64*i}")
        a(f"buffer_load_dwordx4 {vr(vGW+4*i,4)}, v{vT1}, {srd('gw')}, 0 offen offset:{512*ps+64*i}")
    if ps == 0:
        a("s_waitcnt vmcnt(16)")
        for c in range(4): a(f"s_barrier ; G{c}")
    a("s_waitcnt vmcnt(0)")
    for i in range(8):
        for d in range(4):
            a(f"v_dot2_f32_bf16 v{vGT+d}, v{vGX+4*i+d}, v{vGW+4*i+d}, {'0' if ps == 0 and i == 0 else 'v%d' % (vGT+d)}")
a(f"v_add_f32 v{vGT}, v{vGT}, v{vGT+1}")
a(f"v_add_f32 v{vGT+2}, v{vGT+2}, v{vGT+3}")
a(f"v_add_f32 v{vGT}, v{vGT}, v{vGT+2}")
a(f"v_add_f32_dpp v{vGT}, v{vGT}, v{vGT} quad_perm:[1,0,3,2] row_mask:0xf bank_mask:0xf")
a(f"v_add_f32_dpp v{vGT}, v{vGT}, v{vGT} quad_perm:[2,3,0,1] row_mask:0xf bank_mask:0xf")
a(f"v_mul_f32 v{vGT}, {f32(-1.4426950408889634)}, v{vGT}")
a(f"v_exp_f32 v{vGT}, v{vGT}")
a(f"v_add_f32 v{vGT}, 1.0, v{vGT}")
a(f"v_rcp_f32 v{vGT}, v{vGT}")
a(f"s_lshl_b32 {sA}, {sTB}, 10")
a(f"s_lshl_b32 {sB}, {sW}, 7")
a(f"v_sub_f32 v{vGT+1}, 1.0, v{vGT}")
a(f"s_add_u32 {sA}, {sA}, {sB}")
a(f"s_add_u32 {sA}, {sA}, {WS_G}")
a(f"v_lshlrev_b32 v{vT0}, 3, v{vT0}")
a("s_mov_b32 exec_lo, 0x11111111")
a("s_mov_b32 exec_hi, 0x11111111")
a(f"buffer_store_dwordx2 {vr(vGT,2)}, v{vT0}, {srd('ws')}, {sA} offen sc1")
a("s_mov_b64 exec, -1")
for c in range(4, 9): a(f"s_barrier ; G{c}")
a("s_branch L_join")

if STAMPS:
    a("L_stamps:")
    a(f"s_memrealtime s[{STAMP0+2}:{STAMP0+3}]")
    a("s_waitcnt lgkmcnt(0)")
    nst = 2 + NSTAMP
    a(f"s_cmp_lg_u32 {sW}, {STW}")
    a("s_cbranch_scc1 L_end")
    a("s_mov_b64 exec, 1")
    a(f"s_mul_i32 {sA}, s2, {nst*8}")
    a(f"s_add_u32 {sA}, {sA}, 0x8000000")
    for i in range(nst):
        a(f"v_mov_b32 v2, s{STAMP0+2*i}")
        a(f"v_mov_b32 v3, s{STAMP0+2*i+1}")
        a(f"buffer_store_dwordx2 v[2:3], off, {srd('ws')}, {sA} offset:{8*i}")
        a("s_nop 1")
    print("nstamps", nst)
a("L_end:")
a("s_endpgm")

assert BARS['dma'] == BARS['svc'] == BARS['cmp'], BARS
lines, nins = hz.fix(a.lines, verbose="--v" in sys.argv)
print("nops inserted", nins, "lines", len(lines))
hdr = "".join(l for l in open("cdna_kernels/" + NAME + ".s.ref").read().splitlines(True) if l.startswith(";") and "@launch" not in l)
open(OUT, "w").write(wrap("\n".join(lines) + "\n", grid=256, block=768, lds=163840, vgpr=168, header=hdr))
```

```python
import sys, struct
from asmlib import *
import hz

STAMPS = "--stamps" in sys.argv
STW = 0
for x in sys.argv:
    if x.startswith("--stw="): STW = int(x[6:])
PROBE = None
for x in sys.argv:
    if x.startswith("--probe="): PROBE = x[8:]
OUT = [x for x in sys.argv[1:] if not x.startswith("--")]
OUT = OUT[0] if OUT else "k.s"

FL_KV, FL_Y, FL_H, FL_E = 0, 1024, 2048, 4096
WS_G, WS_H, WS_KVT, WS_YT = 0x2000, 0x10000, 0x600000, 0x800000
EPOCH_INC = 0x9E3779B1
SLOT = 28672
KST = 4 * SLOT
UB = 155136
UP = 4352
CRED = 4 * SLOT
RED_P = 272
RED_Q = 64 * RED_P
YB = 5 * 16384
SRD = dict(q=8, k=12, v=16, shk=20, ssmk=24, w1=28, b1=32, w2=36, b2=40, gw=44, out=48, ws=52)
def srd(n): return f"s[{SRD[n]}:{SRD[n]+3}]"
sW, sX, sJ, sTB, sFS, sCG, sT0, sFLAG, sD = "s3", "s4", "s5", "s6", "s7", "s56", "s57", "s58", "s59"
sPR = "s62"
sA, sB, sC, sE = "s63", "s64", "s65", "s66"
sMX, sMW, sMW2 = "s67", "s68", "s69"
STAMP0 = 70
NSTAMP = 14
def f32(x): return "0x%08x" % struct.unpack("<I", struct.pack("<f", x))[0]

a = Asm()
class VM:
    def __init__(self): self.ops = []
    def issue(self, tag): self.ops.append(tag)
    def wait(self, *tags):
        idx = max(i for i, t in enumerate(self.ops) if t in tags)
        n = len(self.ops) - 1 - idx
        assert n < 64, n
        a(f"s_waitcnt vmcnt({n})")
        self.ops = self.ops[idx + 1:]
    def reset(self): self.ops = []
vm = VM()
def stamp(i):
    if PROBE is not None:
        if PROBE == str(i): a("s_memrealtime s[74:75]")
        if PROBE == "c" and i == 12: a("s_memtime s[74:75]")
        return
    if STAMPS:
        assert i < NSTAMP
        r = STAMP0 + 4 + 2 * i
        a(f"s_memtime s[{r}:{r+1}]")
def vr(b, n=1): return f"v{b}" if n == 1 else f"v[{b}:{b+n-1}]"
BARS = {}
def bar(role, name):
    BARS.setdefault(role, []).append(name)
    a(f"s_barrier    ; {name}")

def load_ptrs(names):
    for n in names: a(f"s_load_dwordx2 s[{SRD[n]}:{SRD[n]+1}], s[0:1], {ARG[n]}")
def set_srds(names):
    for n in names:
        a(f"s_mov_b32 s{SRD[n]+2}, {SIZE[n]}")
        a(f"s_mov_b32 s{SRD[n]+3}, 0x20000")
def finish(role_is_stamper):
    if STAMPS:
        a("s_waitcnt vmcnt(0)")
        stamp(NSTAMP - 1)
        a(f"s_branch L_stamps")
    else:
        a("s_endpgm")

vL = 1
vT0, vT1, vT2, vT3, vT4, vT5 = 2, 3, 4, 5, 6, 7
vL16 = 8
AREA_ORDER = [6, 5, 0, 1, 2, 3, 4, 7, 8, 9, 6]

a("s_cmp_ge_u32 s2, 256")
a("s_cbranch_scc1 L_end")
if PROBE is not None:
    a("s_memrealtime s[70:71]")
    a("s_memtime s[76:77]")
    a("s_memrealtime s[74:75]")
if STAMPS:
    a(f"s_memrealtime s[{STAMP0}:{STAMP0+1}]")
    stamp(0)
load_ptrs(["q", "w1", "k", "v", "ssmk", "w2", "ws"])
a(f"v_lshrrev_b32 v{vT0}, 6, v0")
a(f"v_and_b32 v{vL}, 63, v0")
a(f"s_and_b32 {sX}, s2, 7")
a(f"v_readfirstlane_b32 {sW}, v{vT0}")
a(f"s_lshr_b32 {sJ}, s2, 3")
a(f"s_lshr_b32 {sA}, {sJ}, 4")
a(f"s_lshl_b32 {sTB}, {sX}, 1")
a(f"s_add_u32 {sTB}, {sTB}, {sA}")
a(f"s_and_b32 {sFS}, {sJ}, 15")
a(f"s_and_b32 {sCG}, {sJ}, 7")
a(f"s_lshl_b32 {sPR}, {sX}, 5")
a(f"s_add_u32 {sPR}, {sPR}, {sJ}")
a(f"v_lshlrev_b32 v{vL16}, 4, v{vL}")
set_srds(["k", "v", "ssmk", "q", "w1", "w2", "ws"])
a(f"s_cmp_lt_u32 {sW}, 8")
a("s_cbranch_scc1 L_compute")
a(f"s_cmp_ge_u32 {sW}, 10")
a("s_cbranch_scc1 L_service")

R = "dma"
sDW = "s60"
vOX, vOW, vOW2 = 10, 18, 24
def ld(voff, sr, soff, off, tag):
    a(f"buffer_load_dwordx4 v{voff}, {srd(sr)}, {soff} offen offset:{off} lds")
    vm.issue(tag)
a(f"s_sub_u32 {sDW}, {sW}, 8")
a(f"v_lshrrev_b32 v{vT0}, 3, v{vL}")
a(f"v_and_b32 v{vT1}, 7, v{vL}")
a(f"v_lshrrev_b32 v{vT3}, 4, v{vL}")
a(f"v_xor_b32 v{vT3}, v{vT3}, v{vT1}")
a(f"v_lshlrev_b32 v{vT3}, 4, v{vT3}")
a(f"v_lshl_add_u32 v{vOX}, v{vT0}, 10, v{vT3}")
a(f"s_lshl_b32 {sA}, {sTB}, 17")
a(f"s_lshl_b32 {sB}, {sDW}, 16")
a(f"s_add_u32 {sA}, {sA}, {sB}")
a(f"s_cmp_eq_u32 {sFS}, 15")
a(f"s_cselect_b32 {sA}, 0x80000000, {sA}")
a(f"v_add_u32 v{vOX}, {sA}, v{vOX}")
a(f"v_xor_b32 v{vT3}, 64, v{vOX}")
for e in range(1, 8):
    a(f"v_add_u32 v{vOX+e}, {8192*e - 1024*(e%4)}, v{vT3 if e & 1 else vOX}")
a(f"s_lshl_b32 {sMX}, {sDW}, 13")
a(f"s_mul_i32 {sMW}, {sDW}, {32*192}")
def chunk_x(c):
    sb = SLOT * (c % 5)
    a(f"s_movk_i32 {sC}, {128*c}")
    for e in range(8):
        if e % 4 == 0: a(f"s_add_u32 m0, {sMX}, {sb + 1024*e}")
        ld(vOX + e, 'q', sC, 1024 * (e % 4), f'c{c}')
def chunk_w(c):
    sb = SLOT * (c % 5)
    a(f"s_mov_b32 {sC}, {176128*c}")
    for hh in range(2):
        a(f"s_add_u32 m0, {sMW}, {sb + 16384 + 3072*hh}")
        for m in range(3):
            ld(vOW + 3 * hh + m, 'w1', sC, 1024 * m, f'c{c}')
def issue_chunk(c):
    chunk_x(c); chunk_w(c)
a("s_waitcnt lgkmcnt(0)")
stamp(8)
chunk_x(0)
stamp(9)
a(f"s_mul_i32 {sA}, {sFS}, 192")
a(f"s_mul_i32 {sB}, {sDW}, {32*2752}")
a(f"v_mov_b32 v{vT5}, 0x80000000")
for m in range(3):
    a(f"v_add_u32 v{vT3}, {64*m}, v{vL}")
    a(f"v_mul_u32_u24 v{vT4}, 171, v{vT3}")
    a(f"v_lshrrev_b32 v{vT4}, 11, v{vT4}")
    a(f"v_mul_u32_u24 v{vOW+m}, 12, v{vT4}")
    a(f"v_sub_u32 v{vT3}, v{vT3}, v{vOW+m}")
    a(f"v_lshrrev_b32 v{vOW+m}, 3, v{vT4}")
    a(f"v_lshlrev_b32 v{vOW+m}, 1, v{vOW+m}")
    a(f"v_xor_b32 v{vT3}, v{vT3}, v{vOW+m}")
    a(f"v_lshl_add_u32 v{vT3}, v{vT3}, 4, {sA}")
    a(f"v_cmp_lt_u32 vcc, 2751, v{vT3}")
    a(f"v_mul_u32_u24 v{vT4}, 2752, v{vT4}")
    a(f"v_add3_u32 v{vOW+m}, v{vT4}, v{vT3}, {sB}")
    a(f"v_cndmask_b32 v{vOW+m}, v{vOW+m}, v{vT5}, vcc")
    if m < 2: a(f"s_sub_u32 {sB}, {sB}, 1024")
    a(f"v_add_u32 v{vOW+3+m}, {16*2752}, v{vOW+m}")
stamp(10)
chunk_w(0)
stamp(11)
issue_chunk(1)
a(f"v_bfe_u32 v{vT2}, v{vL}, 4, 1")
a(f"v_lshlrev_b32 v{vT3}, 2, v{vT2}")
a(f"v_xor_b32 v{vT3}, v{vT3}, v{vT1}")
a(f"v_lshlrev_b32 v{vT3}, 4, v{vT3}")
a(f"v_lshl_add_u32 v{vOW2}, v{vT0}, 10, v{vT3}")
a(f"s_lshl_b32 {sA}, {sDW}, 15")
a(f"s_lshl_b32 {sB}, {sCG}, 7")
a(f"s_add_u32 {sA}, {sA}, {sB}")
a(f"v_add_u32 v{vOW2}, {sA}, v{vOW2}")
for e in range(1, 4): a(f"v_add_u32 v{vOW2+e}, {7168*e}, v{vOW2}")
a(f"s_lshl_b32 {sMW2}, {sDW}, 12")
def w2_unit(ldsu, ku, tag):
    a(f"s_add_u32 m0, {sMW2}, {8192*ldsu}")
    a(f"s_mov_b32 {sC}, {65536*ku}")
    for e in range(4): ld(vOW2 + e, 'w2', sC, 1024 * e, tag)
def w2_lds_units(units, tag):
    for u in units:
        rnd = AREA_ORDER.index(u // 2)
        w2_unit(u, 2 * rnd + (u & 1), tag)
stamp(1)
bar(R, 'B1')
stamp(2)
issue_chunk(2); issue_chunk(3)
vm.wait('c0'); bar(R, 'G0')
for c in range(1, 8):
    if c + 3 <= 7: issue_chunk(c + 3)
    if c == 5: w2_lds_units([11, 12, 13], 'w2a')
    if c == 7: w2_lds_units([0, 1, 2], 'w2a')
    vm.wait(f'c{c}'); bar(R, f'G{c}')
    if c == 3: stamp(3)
stamp(4)
w2_lds_units([3, 4, 5, 6], 'w2a')
bar(R, 'G8')
w2_lds_units([7, 8, 9, 10], 'w2a')
stamp(5)
bar(R, 'C0')
bar(R, 'C1')
vm.wait('w2a')
stamp(6)
bar(R, 'C2'); bar(R, 'C3'); bar(R, 'C4'); bar(R, 'C5')
w2_lds_units([14, 15, 16, 17, 18, 19], 'w2c')
stamp(7)
bar(R, 'R2')
for u in range(2): w2_unit(12 + u, 20 + u, 'w2d')
vm.wait('w2c'); bar(R, 'R7')
vm.wait('w2d'); bar(R, 'R10')
finish(True)

a("L_service:")
R = "svc"; vm.reset()
sSV = "s60"
vFLAG, vPOLL, vPO = 10, 11, 12
vU = 16
a(f"s_sub_u32 {sSV}, {sW}, 10")
a(f"s_lshr_b32 {sA}, {sJ}, 3")
a(f"s_lshl_b32 {sB}, {sX}, 2")
a(f"s_add_u32 {sA}, {sA}, {sB}")
a(f"s_lshl_b32 {sT0}, {sA}, 6")
a("s_setprio 3")
vK0 = 32
a(f"v_lshrrev_b32 v{vT0}, 3, v{vL}")
a(f"v_and_b32 v{vT1}, 7, v{vL}")
a(f"v_bfe_u32 v{vT2}, v{vL}, 4, 1")
a(f"v_lshlrev_b32 v{vT3}, 1, v{vT2}")
a(f"v_xor_b32 v{vT3}, v{vT3}, v{vT1}")
a(f"v_lshlrev_b32 v{vT3}, 4, v{vT3}")
a(f"v_lshl_add_u32 v{vT3}, v{vT0}, 10, v{vT3}")
a(f"s_lshl_b32 {sA}, {sJ}, 16")
a(f"s_lshl_b32 {sB}, {sSV}, 15")
a(f"s_add_u32 {sA}, {sA}, {sB}")
a(f"s_lshl_b32 {sB}, {sX}, 7")
a(f"s_add_u32 {sA}, {sA}, {sB}")
a(f"v_add_u32 v{vT3}, {sA}, v{vT3}")
a(f"v_xor_b32 v{vK0}, 64, v{vT3}")
a(f"v_add_u32 v{vK0+1}, 7168, v{vT3}")
a(f"v_add_u32 v{vK0+2}, {2*7168}, v{vK0}")
a(f"v_add_u32 v{vK0+3}, {3*7168}, v{vT3}")
a(f"v_subrev_u32 v{vK0+4}, 0x2000, v{vT3}")
a(f"s_lshl_b32 {sMX}, {sSV}, 12")
a(f"s_lshl_b32 {sA}, {sPR}, 13")
a(f"s_add_u32 {sA}, {sA}, {sMX}")
a(f"s_mul_i32 {sB}, {sSV}, {UP}")
a(f"s_add_u32 m0, {sMX}, {KST+1024}")
a("s_waitcnt lgkmcnt(0)")
stamp(10)
a(f"s_load_dword {sFLAG}, s[{SRD['ws']}:{SRD['ws']+1}], {FL_E}")
for e in range(4): a(f"buffer_load_dwordx4 v{vK0+e}, {srd('k')}, 0 offen offset:{1024*e} lds")
a(f"s_add_u32 m0, {sMX}, {KST+8192+1024}")
for e in range(4): a(f"buffer_load_dwordx4 v{vK0+e}, {srd('v')}, 0 offen offset:{1024*e} lds")
lab = a.label("Lhalo")
a(f"s_cmp_lg_u32 {sSV}, 0")
a(f"s_cbranch_scc1 {lab}")
a(f"s_mov_b32 m0, {KST}")
a(f"buffer_load_dwordx4 v{vK0+4}, {srd('k')}, 0 offen lds")
a(lab + ":")
a(f"s_add_u32 m0, {sB}, {UB+256}")
for e in range(4): a(f"buffer_load_dwordx4 v{vL16}, {srd('ssmk')}, {sA} offen offset:{1024*e} lds")
stamp(11)
a("s_getpc_b64 s[20:21]")
a("L_pc:")
a(f"s_lshl_b32 {sA}, {sJ}, 10")
a(f"s_add_u32 {sA}, {sA}, L_compute-L_pc")
a(f"s_min_u32 {sA}, {sA}, L_codeend-L_pc-1024")
a(f"s_add_u32 s20, s20, {sA}")
a("s_addc_u32 s21, s21, 0")
a(f"global_load_dwordx4 {vr(vU,4)}, v{vL16}, s[20:21]")
for i in range(4): a(f"v_mov_b32 v{vU+4+i}, 0")
a(f"s_mul_i32 {sA}, {sSV}, {UP}")
a(f"s_add_u32 {sA}, {sA}, {UB}")
a(f"v_and_b32 v{vT0}, 0xf0, v{vL16}")
a(f"v_add_u32 v{vT0}, {sA}, v{vT0}")
a(f"ds_write_b128 v{vT0}, {vr(vU+4,4)}")
a(f"v_and_b32 v{vPO}, 31, v{vL}")
a(f"v_lshlrev_b32 v{vPO}, 2, v{vPO}")
a("s_waitcnt lgkmcnt(0)")
a(f"s_add_u32 {sFLAG}, {sFLAG}, {EPOCH_INC}")
a(f"v_mov_b32 v{vFLAG}, {sFLAG}")
def signal(fn):
    lab = a.label("Lsig")
    a(f"s_cmp_lg_u32 {sSV}, 0")
    a(f"s_cbranch_scc1 {lab}")
    fn()
    a("s_mov_b64 exec, 1")
    a(f"buffer_store_dword v{vFLAG}, off, {srd('ws')}, {sA} sc1")
    a("s_mov_b64 exec, -1")
    a(lab + ":")
def poll_issue(voff):
    a(f"buffer_load_dword v{vPOLL}, v{voff}, {srd('ws')}, {sE} offen sc1")
def poll_check(voff):
    lab = a.label("Lpoll"); done = a.label("Lpolld")
    a(f"s_mov_b32 {sB}, 0x40000")
    a(lab + ":")
    a("s_waitcnt vmcnt(0)")
    a(f"v_cmp_ne_u32 vcc, v{vPOLL}, v{vFLAG}")
    a(f"s_cbranch_vccz {done}")
    poll_issue(voff)
    a(f"s_sub_u32 {sB}, {sB}, 1")
    a(f"s_cbranch_scc0 {lab}")
    a(done + ":")
def kv_flag_off():
    a(f"s_lshl_b32 {sA}, {sX}, 7")
    a(f"s_lshl_b32 {sB}, {sJ}, 2")
    a(f"s_add_u32 {sA}, {sA}, {sB}")
def h_flag_off():
    a(f"s_lshl_b32 {sA}, {sTB}, 7")
    a(f"s_lshl_b32 {sB}, {sFS}, 2")
    a(f"s_add_u32 {sA}, {sA}, {sB}")
    a(f"s_add_u32 {sA}, {sA}, {FL_H}")
def y_flag_off():
    kv_flag_off()
    a(f"s_add_u32 {sA}, {sA}, {FL_Y}")
stamp(12)
a("s_waitcnt vmcnt(1)")
stamp(1)
bar(R, 'B1'); bar(R, 'G0'); bar(R, 'G1'); bar(R, 'G2'); bar(R, 'G3')
signal(kv_flag_off)
bar(R, 'G4'); bar(R, 'G5')
a(f"s_lshl_b32 {sE}, {sX}, 7")
poll_issue(vPO)
bar(R, 'G6'); bar(R, 'G7')
stamp(2)
poll_check(vPO)
stamp(3)
a(f"s_lshl_b32 {sA}, {sPR}, 13")
a(f"s_lshl_b32 {sB}, {sSV}, 12")
a(f"s_add_u32 {sA}, {sA}, {sB}")
a(f"s_add_u32 {sA}, {sA}, {WS_KVT}")
for e in range(4):
    a(f"buffer_load_dwordx4 {vr(vU+4*e,4)}, v{vL16}, {srd('ws')}, {sA} offen offset:{1024*e} sc1")
a(f"v_and_b32 v{vT0}, 1, v{vL}")
a(f"v_mul_u32_u24 v{vT0}, {UP}, v{vT0}")
a(f"v_lshrrev_b32 v{vT1}, 1, v{vL}")
a(f"v_lshl_add_u32 v{vT0}, v{vT1}, 4, v{vT0}")
a(f"s_lshl_b32 {sB}, {sSV}, 11")
a(f"s_add_u32 {sB}, {sB}, {UB+256}")
a(f"v_add_u32 v{vT0}, {sB}, v{vT0}")
bar(R, 'G8')
a("s_waitcnt vmcnt(0)")
for e in range(4):
    a(f"ds_write_b128 v{vT0}, {vr(vU+4*e,4)} offset:{512*e}")
a("s_waitcnt lgkmcnt(0)")
stamp(4)
bar(R, 'C0'); bar(R, 'C1')
signal(h_flag_off)
a(f"s_lshl_b32 {sE}, {sTB}, 7")
a(f"s_add_u32 {sE}, {sE}, {FL_H}")
a(f"v_and_b32 v{vT2}, 60, v{vPO}")
stamp(5)
poll_issue(vT2); poll_check(vT2)
stamp(6)
bar(R, 'C2')
lab = a.label("Lep"); lp = a.label("Lepl")
a(f"s_or_b32 {sA}, s2, {sSV}")
a(f"s_cmp_lg_u32 {sA}, 0")
a(f"s_cbranch_scc1 {lab}")
a(f"s_mov_b32 {sB}, 0x40000")
a(lp + ":")
a(f"s_sub_u32 {sB}, {sB}, 1")
a(f"s_cbranch_scc1 {lab}")
a(f"buffer_load_dwordx4 {vr(vU,4)}, v{vL16}, {srd('ws')}, 0 offen sc1")
a("s_waitcnt vmcnt(0)")
a(f"v_xor_b32 v{vU}, v{vU}, v{vFLAG}")
for i in range(1, 4):
    a(f"v_xor_b32 v{vU+i}, v{vU+i}, v{vFLAG}")
    a(f"v_or_b32 v{vU}, v{vU}, v{vU+i}")
a(f"v_cmp_ne_u32 vcc, 0, v{vU}")
a(f"s_cbranch_vccnz {lp}")
a("s_mov_b64 exec, 1")
a(f"s_movk_i32 {sA}, {FL_E}")
a(f"buffer_store_dword v{vFLAG}, off, {srd('ws')}, {sA} sc1")
a("s_mov_b64 exec, -1")
a(lab + ":")
bar(R, 'C3'); bar(R, 'C4'); bar(R, 'C5'); bar(R, 'R2')
signal(y_flag_off)
a(f"s_lshl_b32 {sE}, {sCG}, 7")
a(f"s_add_u32 {sE}, {sE}, {FL_Y}")
poll_issue(vPO)
bar(R, 'R7')
stamp(7)
poll_check(vPO)
stamp(8)
a(f"v_lshrrev_b32 v{vT0}, 3, v{vL}")
a(f"v_and_b32 v{vT1}, 7, v{vL}")
a(f"v_lshlrev_b32 v{vT2}, 4, v{vT1}")
a(f"v_lshl_add_u32 v{vT2}, v{vT0}, 12, v{vT2}")
a(f"s_lshl_b32 {sA}, {sCG}, 18")
a(f"s_lshl_b32 {sB}, {sT0}, 1")
a(f"s_add_u32 {sA}, {sA}, {sB}")
a(f"s_lshl_b32 {sB}, {sSV}, 17")
a(f"s_add_u32 {sA}, {sA}, {sB}")
a(f"s_add_u32 {sA}, {sA}, {WS_YT}")
for e in range(4):
    a(f"buffer_load_dwordx4 {vr(vU+4*e,4)}, v{vT2}, {srd('ws')}, {sA} offen sc1")
    if e < 3: a(f"s_add_u32 {sA}, {sA}, 32768")
a(f"v_lshlrev_b32 v{vT3}, 10, v{vT1}")
a(f"v_lshl_add_u32 v{vT3}, v{vT0}, 1, v{vT3}")
a(f"v_add_u32 v{vT3}, {YB}, v{vT3}")
a(f"s_lshl_b32 {sB}, {sSV}, 2")
a(f"v_xor_b32 v{vT1}, {sB}, v{vT1}")
vYA = 32
for e in range(4):
    a(f"v_xor_b32 v{vYA+e}, {e}, v{vT1}")
    a(f"v_lshl_add_u32 v{vYA+e}, v{vYA+e}, 4, v{vT3}")
bar(R, 'R10')
for e in range(4):
    a(f"s_waitcnt vmcnt({3-e})")
    for i in range(8):
        a(f"ds_write_b16{'_d16_hi' if i & 1 else ''} v{vYA+e}, v{vU+4*e+i//2} offset:{128*i}")
a("s_waitcnt lgkmcnt(0)")
stamp(9)
a("s_barrier  ; F1")
finish(True)

a(".p2align 6")
a("L_compute:")
R = "cmp"; vm.reset()
vXA0, vXA1, vWA0, vWA1 = 10, 11, 12, 13
vXB0, vXB1, vWB0, vWB1 = 14, 15, 16, 17
vC1 = 9
vP = 18
PH = 50
a("s_setprio 1")
load_ptrs(["shk", "b1", "b2", "gw", "out"])
a(f"s_load_dwordx2 s[60:61], s[0:1], {ARG['ssmD']}")
set_srds(["shk", "b1", "b2", "gw", "out"])
a(f"s_lshr_b32 {sA}, {sJ}, 3")
a(f"s_lshl_b32 {sB}, {sX}, 2")
a(f"s_add_u32 {sA}, {sA}, {sB}")
a(f"s_lshl_b32 {sT0}, {sA}, 6")
a(f"s_lshl_b32 {sMW2}, {sW}, 10")
vSH = PH; vCH = PH + 2; vB1raw = PH + 4
a(f"v_and_b32 v{vT0}, 15, v{vL}")
a(f"s_and_b32 {sA}, {sW}, 3")
a(f"s_lshl_b32 {sA}, {sA}, 4")
a(f"s_lshl_b32 {sB}, {sX}, 6")
a(f"s_add_u32 {sA}, {sA}, {sB}")
a(f"v_add_u32 v{vCH}, {sA}, v{vT0}")
a(f"v_lshlrev_b32 v{vT0}, 3, v{vCH}")
a(f"v_lshrrev_b32 v{vT1}, 4, v{vL}")
a(f"v_lshlrev_b32 v{vT1}, 3, v{vT1}")
a(f"s_mul_i32 {sA}, {sFS}, 192")
a(f"s_lshr_b32 {sB}, {sW}, 2")
a(f"s_mul_i32 {sB}, {sB}, 96")
a(f"s_add_u32 {sA}, {sA}, {sB}")
a(f"s_lshl_b32 {sB}, {sPR}, 2")
a("s_waitcnt lgkmcnt(0)")
a(f"s_load_dword {sD}, s[60:61], {sB}")
a(f"buffer_load_dwordx2 {vr(vSH,2)}, v{vT0}, {srd('shk')}, 0 offen")
for ft in range(3):
    a(f"buffer_load_dwordx2 {vr(vB1raw+2*ft,2)}, v{vT1}, {srd('b1')}, {sA} offen offset:{32*ft}")
vA0, vA1 = PH + 10, PH + 11
a(f"v_lshrrev_b32 v{vT0}, 4, v{vL}")
a(f"v_bfe_u32 v{vT1}, v{vL}, 2, 2")
a(f"v_lshl_add_u32 v{vT2}, v{vT0}, 3, v{vT1}")
a(f"v_lshlrev_b32 v{vT2}, 7, v{vT2}")
a(f"v_and_b32 v{vT3}, 3, v{vL}")
a(f"v_lshl_add_u32 v{vT2}, v{vT3}, 3, v{vT2}")
a(f"v_lshrrev_b32 v{vT1}, 1, v{vT1}")
a(f"v_and_b32 v{vT0}, 1, v{vT0}")
a(f"v_lshl_or_b32 v{vT1}, v{vT0}, 1, v{vT1}")
a(f"s_and_b32 {sA}, {sW}, 3")
a(f"v_xor_b32 v{vT1}, {sA}, v{vT1}")
a(f"v_lshl_add_u32 v{vA0}, v{vT1}, 5, v{vT2}")
a(f"s_lshr_b32 {sA}, {sW}, 2")
a(f"s_lshl_b32 {sA}, {sA}, 12")
a(f"s_add_u32 {sA}, {sA}, {KST + 4*128}")
a(f"v_add_u32 v{vA0}, {sA}, v{vA0}")
a(f"v_xor_b32 v{vA1}, 64, v{vA0}")
vPA = PH + 12; vSHIFT = PH + 17
a(f"v_bfe_u32 v{vT0}, v{vL}, 1, 1")
a(f"v_lshrrev_b32 v{vT1}, 2, v{vL}")
a(f"v_lshl_add_u32 v{vT0}, v{vT0}, 6, v{vT1}")
a(f"v_and_b32 v{vT1}, 1, v{vL}")
a(f"v_add_u32 v{vT0}, v{vT0}, v{vT1}")
a(f"v_lshlrev_b32 v{vT0}, 2, v{vT0}")
a(f"s_lshr_b32 {sA}, {sW}, 2")
a(f"s_mul_i32 {sA}, {sA}, {UP}")
a(f"s_and_b32 {sB}, {sW}, 3")
a(f"s_lshl_b32 {sB}, {sB}, 6")
a(f"s_add_u32 {sA}, {sA}, {sB}")
a(f"s_add_u32 {sA}, {sA}, {UB + 256 - 16}")
a(f"v_add_u32 v{vPA}, {sA}, v{vT0}")
for i in range(1, 5): a(f"v_add_u32 v{vPA+i}, {4*i}, v{vPA}")
a(f"v_xor_b32 v{vT1}, 1, v{vT1}")
a(f"v_lshlrev_b32 v{vSHIFT}, 4, v{vT1}")
vKVO = PH + 18
a(f"v_lshrrev_b32 v{vT0}, 1, v{vCH}")
a(f"v_lshlrev_b32 v{vT0}, 13, v{vT0}")
a(f"v_and_b32 v{vT1}, 1, v{vCH}")
a(f"v_lshl_add_u32 v{vT0}, v{vT1}, 4, v{vT0}")
a(f"v_lshrrev_b32 v{vT1}, 4, v{vL}")
a(f"v_lshl_add_u32 v{vKVO}, v{vT1}, 5, v{vT0}")
a(f"v_and_b32 v{vT0}, 15, v{vL}")
a(f"v_lshrrev_b32 v{vT1}, 1, v{vT0}")
a(f"v_lshrrev_b32 v{vT2}, 4, v{vL}")
a(f"v_xor_b32 v{vT1}, v{vT1}, v{vT2}")
a(f"v_lshlrev_b32 v{vT1}, 4, v{vT1}")
a(f"v_lshl_add_u32 v{vXA0}, v{vT0}, 7, v{vT1}")
a(f"s_and_b32 {sA}, {sW}, 3")
a(f"s_lshl_b32 {sA}, {sA}, 12")
a(f"v_add_u32 v{vXA0}, {sA}, v{vXA0}")
a(f"v_xor_b32 v{vXA1}, 64, v{vXA0}")
a(f"v_bfe_u32 v{vT0}, v{vL}, 2, 2")
a(f"v_lshl_add_u32 v{vT0}, v{vT2}, 3, v{vT0}")
a(f"v_mul_u32_u24 v{vT0}, 192, v{vT0}")
a(f"v_and_b32 v{vT1}, 3, v{vL}")
a(f"v_lshl_add_u32 v{vT0}, v{vT1}, 3, v{vT0}")
a(f"s_lshr_b32 {sA}, {sW}, 2")
a(f"s_mul_i32 {sB}, {sA}, 96")
a(f"s_add_u32 {sB}, {sB}, 16384")
a(f"v_add_u32 v{vT0}, {sB}, v{vT0}")
a(f"v_and_b32 v{vT1}, 1, v{vT2}")
a(f"s_lshl_b32 {sA}, {sA}, 6")
a(f"s_sub_u32 {sA}, 32, {sA}")
a(f"v_mul_lo_u32 v{vT1}, v{vT1}, {sA}")
a(f"v_add_u32 v{vWA0}, v{vT0}, v{vT1}")
a(f"v_sub_u32 v{vWA1}, v{vT0}, v{vT1}")
a(f"v_mov_b32 v{vC1}, {f32(-2*0.7978845608028654*1.4426950408889634*0.044715)}")
a(f"s_lshl_b32 {sA}, {sJ}, 8")
a(f"s_lshr_b32 {sB}, {sW}, 2")
a(f"s_lshl_b32 {sB}, {sB}, 7")
a(f"s_add_u32 {sA}, {sA}, {sB}")
a(f"s_add_u32 {sE}, {sA}, {WS_KVT}")
vWo0, vWo1, vWe0, vWe1, vWe2 = PH+30, PH+31, PH+32, PH+33, PH+34
a("s_waitcnt vmcnt(0) lgkmcnt(0)")
a(f"v_alignbit_b32 v{vWo0}, v{vSH}, v{vSH}, 16")
a(f"v_alignbit_b32 v{vWo1}, v{vSH+1}, v{vSH+1}, 16")
a(f"v_and_b32 v{vWe0}, 0xffff, v{vSH}")
a(f"v_mov_b32 v{vT0}, 0xffff")
a(f"v_bfi_b32 v{vWe1}, v{vT0}, v{vSH+1}, v{vSH}")
a(f"v_and_b32 v{vWe2}, 0xffff0000, v{vSH+1}")
vACC = PH + 92
for ft in range(3):
    for h in range(2):
        for tt2 in range(2):
            a(f"v_lshlrev_b32 v{vACC+8*ft+4*tt2+2*h}, 16, v{vB1raw+2*ft+h}")
            a(f"v_and_b32 v{vACC+8*ft+4*tt2+2*h+1}, 0xffff0000, v{vB1raw+2*ft+h}")
stamp(1)
bar(R, 'B1')
stamp(2)
vK = PH + 20; vV = PH + 26
a(f"ds_read_b64_tr_b16 {vr(vK,2)}, v{vA0}")
a(f"ds_read_b64_tr_b16 {vr(vK+2,2)}, v{vA1} offset:512")
a(f"ds_read_b64_tr_b16 {vr(vK+4,2)}, v{vA1} offset:1024")
a(f"ds_read_b64_tr_b16 {vr(vV,2)}, v{vA1} offset:{8192+512}")
a(f"ds_read_b64_tr_b16 {vr(vV+2,2)}, v{vA1} offset:{8192+1024}")
vPW = PH + 52
def p_reads(ns):
    for n in ns:
        for i in range(5):
            a(f"ds_read2st64_b32 {vr(vPW+8*i+n,2)}, v{vPA+i} offset0:{2*n} offset1:{2*n+2}")
p_reads([0, 2])
a("s_waitcnt lgkmcnt(10)")
vKS = PH + 36
for p in range(4):
    a(f"v_dot2_f32_bf16 v{vKS+2*p}, v{vK+p}, v{vWe2}, 0")
    a(f"v_dot2_f32_bf16 v{vKS+2*p+1}, v{vK+p+1}, v{vWo1}, 0")
for p in range(4):
    a(f"v_dot2_f32_bf16 v{vKS+2*p}, v{vK+p+1}, v{vWe1}, v{vKS+2*p}")
    a(f"v_dot2_f32_bf16 v{vKS+2*p+1}, v{vK+p+2}, v{vWo0}, v{vKS+2*p+1}")
for p in range(4):
    a(f"v_dot2_f32_bf16 v{vKS+2*p}, v{vK+p+2}, v{vWe0}, v{vKS+2*p}")
p_reads([4, 6])
vVF = PH + 44
for p in range(4):
    a(f"v_lshlrev_b32 v{vVF+2*p}, 16, v{vV+p}")
    a(f"v_and_b32 v{vVF+2*p+1}, 0xffff0000, v{vV+p}")
for e in range(8):
    a(f"v_mul_f32 v{vKS+e}, v{vKS+e}, v{vVF+e}")
vKVP = PH + 26
for d in range(4):
    a(f"v_cvt_pk_bf16_f32 v{vKVP+d}, v{vKS+7-2*d}, v{vKS+6-2*d}")
a(f"buffer_store_dwordx4 {vr(vKVP,4)}, v{vKVO}, {srd('ws')}, {sE} offen sc1")
def p_align(ns):
    for n in ns:
        for i in range(4):
            a(f"v_alignbit_b32 v{vP+4*n+i}, v{vPW+8*(i+1)+n}, v{vPW+8*i+n}, v{vSHIFT}")
a("s_waitcnt lgkmcnt(10)")
p_align(range(4))
a("s_waitcnt lgkmcnt(0)")
p_align(range(4, 8))
stamp(3)
a(f"s_cmp_eq_u32 {sFS}, 15")
a("s_cbranch_scc1 L_gwg")
vF0 = PH; vF1 = [PH + 20, PH + 40]
def g1_reads(c, ks, dst):
    for tt2 in range(2):
        a(f"ds_read_b128 {vr(dst+4*tt2,4)}, v{(vXB0,vXB1)[ks]} offset:{2048*tt2}")
    for ft in range(3):
        for u in range(2):
            a(f"ds_read_b64_tr_b16 {vr(dst+8+4*ft+2*u,2)}, v{(vWB0,vWB1)[ft&1]} offset:{32*ft + (32*ks+4*u)*192}")
def g1_mfma(src, waits=None):
    for ft in range(3):
        if waits is not None: a(f"s_waitcnt lgkmcnt({waits - 2*ft})")
        for tt2 in range(2):
            d = vr(vACC + 8*ft + 4*tt2, 4)
            a(f"v_mfma_f32_16x16x32_bf16 {d}, {vr(src+8+4*ft,4)}, {vr(src+4*tt2,4)}, {d}")
for c in range(8):
    sb = SLOT * (c % 5)
    for (d, s) in ((vXB0, vXA0), (vXB1, vXA1), (vWB0, vWA0), (vWB1, vWA1)):
        a(f"v_add_u32 v{d}, {sb}, v{s}")
    if c == 3: a("s_waitcnt vmcnt(0)")
    bar(R, f'G{c}')
    if c == 4: stamp(4)
    g1_reads(c, 0, vF0)
    g1_reads(c, 1, vF1[c & 1])
    if c > 0: g1_mfma(vF1[(c - 1) & 1])
    g1_mfma(vF0, waits=12)
    a("s_waitcnt lgkmcnt(0)")
bar(R, 'G8')
stamp(5)
g1_mfma(vF1[1])
C0 = f32(-2*0.7978845608028654*1.4426950408889634)
vG = PH; vHP = PH + 8
a(f"s_lshl_b32 {sA}, {sTB}, 2")
a(f"s_and_b32 {sB}, {sW}, 3")
a(f"s_add_u32 {sA}, {sA}, {sB}")
a(f"s_mul_i32 {sA}, {sA}, 86")
a(f"s_mul_i32 {sB}, {sFS}, 6")
a(f"s_lshr_b32 {sC}, {sW}, 2")
a(f"s_mul_i32 {sC}, {sC}, 3")
a(f"s_add_u32 {sB}, {sB}, {sC}")
a(f"s_add_u32 {sA}, {sA}, {sB}")
a(f"s_lshl_b32 {sA}, {sA}, 10")
a(f"s_add_u32 {sA}, {sA}, {WS_H}")
for ft in range(3):
    base = vACC + 8 * ft
    for e in range(8): a(f"v_mul_f32 v{vG+e}, v{base+e}, v{base+e}")
    for e in range(8): a(f"v_fmaak_f32 v{vG+e}, v{vG+e}, v{vC1}, {C0}")
    for e in range(8): a(f"v_mul_f32 v{vG+e}, v{vG+e}, v{base+e}")
    for e in range(8): a(f"v_exp_f32 v{vG+e}, v{vG+e}")
    for e in range(8): a(f"v_add_f32 v{vG+e}, 1.0, v{vG+e}")
    for e in range(8): a(f"v_rcp_f32 v{vG+e}, v{vG+e}")
    for e in range(8): a(f"v_mul_f32 v{vG+e}, v{vG+e}, v{base+e}")
    hp = vHP + 4 * ft
    for d in range(4): a(f"v_cvt_pk_bf16_f32 v{hp+d}, v{vG+2*d}, v{vG+2*d+1}")
    a(f"s_cmp_lt_u32 {sB}, {86-ft}")
    a(f"s_cselect_b32 {sC}, {sA}, 0x40000000")
    a(f"v_permlane16_swap_b32 v{hp}, v{hp+2}")
    a(f"v_permlane16_swap_b32 v{hp+1}, v{hp+3}")
    a(f"buffer_store_dwordx4 {vr(hp,4)}, v{vL16}, {srd('ws')}, {sC} offen offset:{1024*ft} sc1")
a("L_join:")
stamp(6)
vSA, vUA, vRA = vXA0, vXA1, vWA0
a(f"v_and_b32 v{vT2}, 15, v{vL}")
a(f"v_lshrrev_b32 v{vT3}, 4, v{vL}")
a(f"v_sub_u32 v{vSA}, v{vT2}, v{vT3}")
a(f"v_lshlrev_b32 v{vSA}, 4, v{vSA}")
a(f"s_lshr_b32 {sA}, {sW}, 2")
a(f"s_mul_i32 {sA}, {sA}, {UP}")
a(f"s_add_u32 {sA}, {sA}, {UB+256}")
a(f"s_and_b32 {sB}, {sW}, 3")
a(f"s_lshl_b32 {sC}, {sB}, 6")
a(f"s_sub_u32 {sC}, {sA}, {sC}")
a(f"v_add_u32 v{vSA}, {sC}, v{vSA}")
NS = 6
vH = PH + 20
vCA = PH + 24
vS = PH
vHa = PH + 58
vUD = 164
TORD = list(range(0, 16, 2)) + list(range(1, 16, 2))
def s_read(i): a(f"ds_read_b128 {vr(vS+4*(i%NS),4)}, v{vSA} offset:{256*TORD[i]}")
bar(R, 'C0')
for i in range(NS): s_read(i)
a(f"v_lshlrev_b32 v{vUA}, 4, v{vT2}")
a(f"v_lshlrev_b32 v{vT3}, 2, v{vT3}")
a(f"v_sub_u32 v{vUA}, v{vUA}, v{vT3}")
a(f"s_lshl_b32 {sB}, {sB}, 10")
a(f"s_add_u32 {sA}, {sA}, {sB}")
a(f"s_add_u32 {sA}, {sA}, 12")
a(f"v_add_u32 v{vUA}, {sA}, v{vUA}")
a(f"v_mov_b32 v{vCA+32}, 0")
a(f"v_mov_b32 v{vCA+33}, 0")
a(f"s_lshr_b32 {sE}, {sT0}, 5")
a(f"s_lshr_b32 {sB}, {sW}, 2")
a(f"s_add_u32 {sE}, {sE}, {sB}")
a(f"s_mul_i32 {sE}, {sE}, 86")
a(f"s_and_b32 {sB}, {sW}, 3")
a(f"s_lshl_b32 {sC}, {sB}, 1")
a(f"s_add_u32 {sE}, {sE}, {sC}")
a(f"s_lshl_b32 {sE}, {sE}, 10")
a(f"s_add_u32 {sE}, {sE}, {WS_H}")
def hreg(rnd):
    if rnd < 7: return vHa + 8 * rnd
    if rnd < 9: return vP + 8 * (rnd - 7)
    return vHa + 8 * (rnd - 9)
hl = [0]
def h_load():
    rnd, s2 = divmod(hl[0], 2); hl[0] += 1
    if rnd == 10 and s2 == 0:
        a(f"s_and_b32 {sC}, {sW}, 3")
        a(f"s_cmp_eq_u32 {sC}, 3")
        a(f"s_cselect_b32 {sE}, 0x40000000, {sE}")
    a(f"buffer_load_dwordx4 {vr(hreg(rnd)+4*s2,4)}, v{vL16}, {srd('ws')}, {sE} offen offset:{1024*s2} sc1"); vm.issue(f'h{rnd}')
    if s2 == 1 and rnd < 10: a(f"s_add_u32 {sE}, {sE}, 8192")
C1_AT, C2_AT = 4, 10
cnt = 0
for i, T in enumerate(TORD):
    if i == C1_AT:
        a("s_waitcnt vmcnt(0)"); bar(R, 'C1')
    if i == C2_AT:
        bar(R, 'C2'); stamp(7)
    out = min(NS, 16 - i) - 1
    a(f"s_waitcnt lgkmcnt({out})")
    for n in range((15 - T) // 2 + 1):
        d = vr(vCA + 2 * (2 * n + T), 4)
        a(f"v_mfma_f32_16x16x32_bf16 {d}, {vr(vP+4*n,4)}, {vr(vS+4*(i%NS),4)}, {'0' if T == 0 else d}")
        if i >= C2_AT:
            cnt += 1
            if cnt % 3 == 0: h_load()
    if i + NS < 16: s_read(i + NS)
for jj in range(4):
    a(f"ds_read_b32 v{vUD+jj}, v{vUA} offset:{256*jj}")
h_load()
a(f"s_lshr_b32 {sA}, {sW}, 2")
a(f"s_mul_i32 {sA}, {sA}, {4*3*2048}")
a(f"s_add_u32 {sA}, {sA}, {CRED}")
a(f"v_add_u32 v{vRA}, {sA}, v{vL16}")
a(f"s_and_b32 {sB}, {sW}, 3")
a("s_waitcnt lgkmcnt(0)")
bar(R, 'C3')
stamp(8)
lab_done = a.label("Lred")
labs = [a.label("Lt") for _ in range(4)]
for t in range(1, 4):
    a(f"s_cmp_eq_u32 {sB}, {t}")
    a(f"s_cbranch_scc1 {labs[t]}")
vY = vP + 16
for t in range(4):
    a(labs[t] + ":")
    for g in range(4):
        if g == t: continue
        sl = (t - g - 1) & 3
        off = (g * 3 + sl) * 2048
        a(f"ds_write_b128 v{vRA}, {vr(vCA+8*g,4)} offset:{off}")
        a(f"ds_write_b128 v{vRA}, {vr(vCA+8*g+4,4)} offset:{off+1024}")
    for e in range(8): a(f"v_mov_b32 v{vY+e}, v{vCA+8*t+e}")
    if t < 3: a(f"s_branch {lab_done}")
a(lab_done + ":")
h_load(); h_load()
a(f"s_mul_i32 {sB}, {sB}, {3*2048}")
a(f"v_add_u32 v{vRA}, {sB}, v{vRA}")
a(f"s_lshr_b32 {sA}, {sW}, 2")
a(f"s_lshl_b32 {sA}, {sA}, 4")
a(f"s_lshr_b32 {sA}, {sD}, {sA}")
a(f"s_lshl_b32 {sA}, {sA}, 16")
vUF = vP + 24
for jj in range(4):
    a(f"v_and_b32 v{vUF+2*jj}, 0xffff0000, v{vUD+jj}")
    a(f"v_lshlrev_b32 v{vUF+2*jj+1}, 16, v{vUD+jj}")
for e in range(8): a(f"v_fmac_f32 v{vY+e}, {sA}, v{vUF+e}")
a("s_waitcnt lgkmcnt(0)")
bar(R, 'C4')
vR = vS
for i in range(6):
    a(f"ds_read_b128 {vr(vR+4*i,4)}, v{vRA} offset:{1024*i}")
h_load(); h_load()
for s in range(3):
    a(f"s_waitcnt lgkmcnt({4-2*s})")
    if s == 2: bar(R, 'C5')
    for e in range(8): a(f"v_add_f32 v{vY+e}, v{vY+e}, v{vR+8*s+e}")
vYP = vUF
for jj in range(4): a(f"v_cvt_pk_bf16_f32 v{vYP+jj}, v{vY+2*jj}, v{vY+2*jj+1}")
a(f"s_lshl_b32 {sA}, {sPR}, 13")
a(f"s_add_u32 {sA}, {sA}, {sMW2}")
a(f"s_add_u32 {sA}, {sA}, {WS_YT}")
a(f"v_permlane32_swap_b32 v{vYP}, v{vYP+2}")
a(f"v_permlane32_swap_b32 v{vYP+1}, v{vYP+3}")
a(f"v_permlane16_swap_b32 v{vYP}, v{vYP+1}")
a(f"v_permlane16_swap_b32 v{vYP+2}, v{vYP+3}")
a(f"buffer_store_dwordx4 {vr(vYP,4)}, v{vL16}, {srd('ws')}, {sA} offen sc1"); vm.issue('yst')
stamp(9)
vOA = PH + 26
vAF = [PH - 8 + 0, PH + 8]
vBA = [vXA0, vXA1]; vBB = [vXB0, vXB1]
vQ = vP + 16
vB2 = vP + 20
vGG = 164
a(f"v_lshrrev_b32 v{vT0}, 5, v{vL}")
a(f"v_bfe_u32 v{vT1}, v{vL}, 2, 2")
a(f"v_lshl_add_u32 v{vT0}, v{vT0}, 3, v{vT1}")
a(f"v_lshlrev_b32 v{vT0}, 7, v{vT0}")
a(f"v_lshrrev_b32 v{vT1}, 1, v{vT1}")
a(f"v_lshl_add_u32 v{vT0}, v{vT1}, 6, v{vT0}")
a(f"v_bfe_u32 v{vT1}, v{vL}, 4, 1")
a(f"v_lshl_add_u32 v{vT0}, v{vT1}, 5, v{vT0}")
a(f"v_and_b32 v{vT1}, 3, v{vL}")
a(f"v_lshl_add_u32 v{vT0}, v{vT1}, 3, v{vT0}")
a(f"s_and_b32 {sB}, {sW}, 3")
a(f"s_lshl_b32 {sB}, {sB}, 12")
a(f"v_add_u32 v{vBA[0]}, {sB}, v{vT0}")
a(f"v_xor_b32 v{vBA[1]}, 64, v{vBA[0]}")
def w2_reads(rnd):
    buf = vAF[rnd & 1]
    base = 16384 * AREA_ORDER[rnd]
    for nt in range(2): a(f"v_add_u32 v{vBB[nt]}, {base}, v{vBA[nt]}")
    for s2 in range(2):
        for nt in range(2):
            for u in range(2):
                a(f"ds_read_b64_tr_b16 {vr(buf+8*s2+4*nt+2*u,2)}, v{vBB[nt]} offset:{(16*s2+4*u)*128}")
def g2_mfma(rnd, nlater, loads):
    buf = vAF[rnd & 1]
    if f'h{rnd}' in vm.ops: vm.wait(f'h{rnd}')
    for s2 in range(2):
        a(f"s_waitcnt lgkmcnt({nlater + 4*(1-s2)})")
        for nt in range(2):
            d = vr(vOA + 16 * nt, 16)
            a(f"v_mfma_f32_32x32x16_bf16 {d}, {vr(buf+8*s2+4*nt,4)}, {vr(hreg(rnd)+4*s2,4)}, {'0' if (rnd == 0 and s2 == 0) else d}")
        if loads: loads.pop(0)()
w2_reads(0)
a(f"v_lshrrev_b32 v{vT0}, 3, v0")
a(f"v_and_b32 v{vT1}, 7, v0")
a(f"v_lshlrev_b32 v{vT2}, 4, v{vT1}")
a(f"v_lshl_add_u32 v{vWA1}, v{vT0}, 10, v{vT2}")
a(f"v_lshlrev_b32 v{vT3}, 3, v{vT0}")
a(f"s_lshl_b32 {sMX}, {sT0}, 10")
a(f"s_lshl_b32 {sMW}, {sCG}, 7")
a(f"s_add_u32 {sMX}, {sMX}, {sMW}")
a(f"s_lshl_b32 {sA}, {sT0}, 3")
a(f"s_add_u32 {sA}, {sA}, {WS_G}")
def ld_q(): a(f"buffer_load_dwordx4 {vr(vQ,4)}, v{vWA1}, {srd('q')}, {sMX} offen"); vm.issue('sm')
def ld_b2(): a(f"buffer_load_dwordx4 {vr(vB2,4)}, v{vT2}, {srd('b2')}, {sMW} offen"); vm.issue('sm')
def ld_g(): a(f"buffer_load_dwordx2 {vr(vGG,2)}, v{vT3}, {srd('ws')}, {sA} offen sc1"); vm.issue('sm')
pend = [h_load] * (22 - hl[0]) + [ld_q, ld_b2, ld_g]
print("H loads issued before gemm2:", hl[0])
for rnd in range(11):
    if rnd == 2:
        vm.wait('yst'); bar(R, 'R2')
    nxt = rnd + 1
    if nxt == 7: bar(R, 'R7')
    if nxt == 10: bar(R, 'R10')
    if nxt < 11:
        w2_reads(nxt); g2_mfma(rnd, 8, pend)
    else:
        g2_mfma(rnd, 0, pend)
    assert hl[0] <= 2 * (rnd + 10), "H ring overwrite"
assert not pend
stamp(10)
a(f"v_and_b32 v{vT3}, 31, v{vL}")
a(f"v_mul_u32_u24 v{vT3}, {RED_P}, v{vT3}")
a(f"v_lshrrev_b32 v{vT4}, 5, v{vL}")
a(f"v_lshl_add_u32 v{vT3}, v{vT4}, 4, v{vT3}")
a(f"s_and_b32 {sA}, {sW}, 3")
a(f"s_mul_i32 {sA}, {sA}, {RED_Q}")
a(f"s_lshr_b32 {sB}, {sW}, 2")
a(f"s_mul_i32 {sB}, {sB}, {32*RED_P}")
a(f"s_add_u32 {sA}, {sA}, {sB}")
a(f"v_add_u32 v{vT3}, {sA}, v{vT3}")
a(f"v_mul_u32_u24 v{vT4}, {RED_P}, v{vT0}")
a(f"v_lshl_add_u32 v{vT4}, v{vT1}, 5, v{vT4}")
a(f"v_xor_b32 v{vT5}, {sW}, v{vT1}")
a(f"v_lshlrev_b32 v{vT5}, 4, v{vT5}")
a(f"v_lshl_add_u32 v{vT5}, v{vT0}, 7, v{vT5}")
a(f"v_add_u32 v{vT5}, {YB}, v{vT5}")
vYT = 108; vQF = 112; vYF = 120; vBF = 128; vF = 42; vE = 136
for nt in range(2):
    for g in range(4):
        a(f"ds_write_b128 v{vT3}, {vr(vOA+16*nt+4*g,4)} offset:{128*nt+32*g}")
a("s_waitcnt vmcnt(0)")
for d in range(4):
    a(f"v_lshlrev_b32 v{vQF+2*d}, 16, v{vQ+d}")
    a(f"v_and_b32 v{vQF+2*d+1}, 0xffff0000, v{vQ+d}")
    a(f"v_lshlrev_b32 v{vBF+2*d}, 16, v{vB2+d}")
    a(f"v_and_b32 v{vBF+2*d+1}, 0xffff0000, v{vB2+d}")
for e in range(8): a(f"v_mul_f32 v{vQF+e}, v{vGG}, v{vQF+e}")
a("s_waitcnt lgkmcnt(0)")
a("s_barrier")
stamp(11)
a(f"ds_read_b128 {vr(vYT,4)}, v{vT5}")
for kq in range(4):
    for h in range(2):
        a(f"ds_read_b128 {vr(vF+8*kq+4*h,4)}, v{vT4} offset:{kq*RED_Q+16*h}")
a("s_waitcnt lgkmcnt(8)")
for d in range(4):
    a(f"v_lshlrev_b32 v{vYF+2*d}, 16, v{vYT+d}")
    a(f"v_and_b32 v{vYF+2*d+1}, 0xffff0000, v{vYT+d}")
for e in range(8): a(f"v_mul_f32 v{vQF+e}, v{vQF+e}, v{vYF+e}")
for kq in range(4):
    a(f"s_waitcnt lgkmcnt({6-2*kq})")
    for e in range(8): a(f"v_add_f32 v{vBF+e}, v{vBF+e}, v{vF+8*kq+e}")
for e in range(8): a(f"v_fmac_f32 v{vQF+e}, v{vGG+1}, v{vBF+e}")
for d in range(4): a(f"v_cvt_pk_bf16_f32 v{vE+d}, v{vQF+2*d}, v{vQF+2*d+1}")
a(f"buffer_store_dwordx4 {vr(vE,4)}, v{vWA1}, {srd('out')}, {sMX} offen")
stamp(12)
if PROBE is not None:
    a("s_waitcnt lgkmcnt(0)")
    if PROBE == "c":
        a("s_sub_u32 s74, s74, s76")
        a("s_lshr_b32 s74, s74, 4")
        a("s_add_u32 s74, s74, s70")
    a("s_add_u32 s74, s74, 4000")
    a("L_spin:")
    a("s_memrealtime s[72:73]")
    a("s_waitcnt lgkmcnt(0)")
    a("s_sub_u32 s72, s72, s74")
    a("s_cmp_lt_i32 s72, 0")
    a("s_cbranch_scc1 L_spin")
finish(True)
a("L_codeend:")

a("L_gwg:")
vGX = PH; vGW = PH + 32; vGT = PH + 64
a(f"v_lshrrev_b32 v{vT0}, 2, v{vL}")
a(f"v_and_b32 v{vT1}, 3, v{vL}")
a(f"v_lshlrev_b32 v{vT1}, 4, v{vT1}")
a(f"v_lshl_add_u32 v{vT2}, v{vT0}, 10, v{vT1}")
a(f"s_lshl_b32 {sA}, {sTB}, 17")
a(f"s_lshl_b32 {sB}, {sW}, 14")
a(f"s_add_u32 {sA}, {sA}, {sB}")
for ps in range(2):
    for i in range(8):
        a(f"buffer_load_dwordx4 {vr(vGX+4*i,4)}, v{vT2}, {srd('q')}, {sA} offen offset:{512*ps+64*i}")
        a(f"buffer_load_dwordx4 {vr(vGW+4*i,4)}, v{vT1}, {srd('gw')}, 0 offen offset:{512*ps+64*i}")
    if ps == 0:
        a("s_waitcnt vmcnt(16)")
        for c in range(4): a(f"s_barrier ; G{c}")
    a("s_waitcnt vmcnt(0)")
    for i in range(8):
        for d in range(4):
            a(f"v_dot2_f32_bf16 v{vGT+d}, v{vGX+4*i+d}, v{vGW+4*i+d}, {'0' if ps == 0 and i == 0 else 'v%d' % (vGT+d)}")
a(f"v_add_f32 v{vGT}, v{vGT}, v{vGT+1}")
a(f"v_add_f32 v{vGT+2}, v{vGT+2}, v{vGT+3}")
a(f"v_add_f32 v{vGT}, v{vGT}, v{vGT+2}")
a(f"v_add_f32_dpp v{vGT}, v{vGT}, v{vGT} quad_perm:[1,0,3,2] row_mask:0xf bank_mask:0xf")
a(f"v_add_f32_dpp v{vGT}, v{vGT}, v{vGT} quad_perm:[2,3,0,1] row_mask:0xf bank_mask:0xf")
a(f"v_mul_f32 v{vGT}, {f32(-1.4426950408889634)}, v{vGT}")
a(f"v_exp_f32 v{vGT}, v{vGT}")
a(f"v_add_f32 v{vGT}, 1.0, v{vGT}")
a(f"v_rcp_f32 v{vGT}, v{vGT}")
a(f"s_lshl_b32 {sA}, {sTB}, 10")
a(f"s_lshl_b32 {sB}, {sW}, 7")
a(f"v_sub_f32 v{vGT+1}, 1.0, v{vGT}")
a(f"s_add_u32 {sA}, {sA}, {sB}")
a(f"s_add_u32 {sA}, {sA}, {WS_G}")
a(f"v_lshlrev_b32 v{vT0}, 3, v{vT0}")
a("s_mov_b32 exec_lo, 0x11111111")
a("s_mov_b32 exec_hi, 0x11111111")
a(f"buffer_store_dwordx2 {vr(vGT,2)}, v{vT0}, {srd('ws')}, {sA} offen sc1")
a("s_mov_b64 exec, -1")
for c in range(4, 9): a(f"s_barrier ; G{c}")
a("s_branch L_join")

if STAMPS:
    a("L_stamps:")
    a(f"s_memrealtime s[{STAMP0+2}:{STAMP0+3}]")
    a("s_waitcnt lgkmcnt(0)")
    nst = 2 + NSTAMP
    a(f"s_cmp_lg_u32 {sW}, {STW}")
    a("s_cbranch_scc1 L_end")
    a("s_mov_b64 exec, 1")
    a(f"s_mul_i32 {sA}, s2, {nst*8}")
    a(f"s_add_u32 {sA}, {sA}, 0x8000000")
    for i in range(nst):
        a(f"v_mov_b32 v2, s{STAMP0+2*i}")
        a(f"v_mov_b32 v3, s{STAMP0+2*i+1}")
        a(f"buffer_store_dwordx2 v[2:3], off, {srd('ws')}, {sA} offset:{8*i}")
        a("s_nop 1")
    print("nstamps", nst)
a("L_end:")
a("s_endpgm")

assert BARS['dma'] == BARS['svc'] == BARS['cmp'], BARS
lines, nins = hz.fix(a.lines, verbose="--v" in sys.argv)
print("nops inserted", nins, "lines", len(lines))
hdr = "".join(l for l in open("cdna_kernels/" + NAME + ".s.ref").read().splitlines(True) if l.startswith(";") and "@launch" not in l)
open(OUT, "w").write(wrap("\n".join(lines) + "\n", grid=256, block=768, lds=163840, vgpr=168, header=hdr))
```
